```python
import torch

def _softmax(x, axis=-1):
    return torch.softmax(x, dim=axis)

def _gelu(x):
    return torch.nn.functional.gelu(x, approximate='tanh')

def _silu(x):
    return torch.nn.functional.silu(x)

def _sigmoid(x):
    return torch.sigmoid(x)

def _layernorm(x, axis=-1, eps=1e-05):
    m = x.mean(dim=axis, keepdim=True)
    v = x.var(dim=axis, keepdim=True, unbiased=False)
    return (x - m) / torch.sqrt(v + eps)

def _scatter_add(tgt, idx, src, axis=0):
    return tgt.clone().index_add_(axis, idx, src)

def _segment_sum(src, seg, n):
    out = torch.zeros((n,) + src.shape[1:], dtype=src.dtype)
    return out.index_add_(0, seg, src)

def _pad(x, pw):
    flat = tuple((v for pair in reversed(pw) for v in pair))
    return torch.nn.functional.pad(x, flat)
kernel_name = 'adaLN_cond__sliding_block_cached__swiglu_ffn__prompt'

def setup_inputs():

    _w = lambda a: (lambda t: t.to(torch.bfloat16) if t.is_floating_point() else t)(torch.as_tensor(a))

    def _A_setup():
        B, Sq, D = (1, 2048, 640)
        Hq, Hkv, Sk, Dh = (32, 32, 2048, 128)
        assert Hq % Hkv == 0, (Hq, Hkv)
        return {'x': _w((lambda *s: torch.randn(*s, dtype=torch.bfloat16) * 0.05)(B, Sq, D)), 'k_cache': _w((lambda *s: torch.randn(*s, dtype=torch.bfloat16) * 3.2)(B, Hkv, Sk, Dh)), 'v_cache': _w((lambda *s: torch.randn(*s, dtype=torch.bfloat16) * 0.4)(B, Hkv, Sk, Dh)), 'wq': _w((lambda *s: torch.randn(*s, dtype=torch.bfloat16) * 3.2)(D, Hq * Dh) * D ** (-0.5)), 'wo': _w((lambda *s: torch.randn(*s, dtype=torch.bfloat16) * 0.4)(Hq * Dh, D) * (Hq * Dh) ** (-0.5))}
    _A_in = _A_setup()

    def _B_setup():
        B, S, D, F = (1, 2048, 640, 1728)
        return {'x': _w((lambda *s: torch.randn(*s, dtype=torch.bfloat16) * 0.05)(B, S, D)), 'w_gate': _w((lambda *s: torch.randn(*s, dtype=torch.bfloat16) * 0.05)(D, F)), 'w_up': _w((lambda *s: torch.randn(*s, dtype=torch.bfloat16) * 0.05)(D, F)), 'w_down': _w((lambda *s: torch.randn(*s, dtype=torch.bfloat16) * 0.05)(F, D))}
    _B_in = _B_setup()
    return {'A_x': _A_in['x'], 'A_k_cache': _A_in['k_cache'], 'A_v_cache': _A_in['v_cache'], 'A_wq': _A_in['wq'], 'A_wo': _A_in['wo'], 'B_x': _B_in['x'], 'B_w_gate': _B_in['w_gate'], 'B_w_up': _B_in['w_up'], 'B_w_down': _B_in['w_down'], 'c': _w((lambda *s: torch.randn(*s, dtype=torch.bfloat16) * 0.1)(1, 640) * 8.0), 'w_mod': _w((lambda *s: torch.randn(*s, dtype=torch.bfloat16) * 0.1)(640, 6 * 640) * 640 ** (-0.5) * 8.0)}

def reference(A_x, A_k_cache, A_v_cache, A_wq, A_wo, B_x, B_w_gate, B_w_up, B_w_down, c, w_mod):

    def _A_ref(x, k_cache, v_cache, wq, wo):
        B, Sq, D = x.shape
        Hq, Dh = (32, 128)
        Hkv, Sk = (k_cache.shape[1], k_cache.shape[2])
        W = min(4096, max(256, Sk // 4))
        rep = Hq // Hkv
        q = (lambda x, *d: x.permute(*d))((x @ wq).reshape(B, Sq, Hq, Dh), 0, 2, 1, 3)
        k = (lambda x, n, axis: torch.repeat_interleave(x, n, dim=axis))(k_cache[:, :, Sk - W:, :], rep, axis=1)
        v = (lambda x, n, axis: torch.repeat_interleave(x, n, dim=axis))(v_cache[:, :, Sk - W:, :], rep, axis=1)
        scores = torch.einsum('bhqd,bhkd->bhqk', q, k) * Dh ** (-0.5)
        p = _softmax(scores, axis=-1)
        o = torch.einsum('bhqk,bhkd->bhqd', p, v)
        return (lambda x, *d: x.permute(*d))(o, 0, 2, 1, 3).reshape(B, Sq, Hq * Dh) @ wo

    def _B_ref(x, w_gate, w_up, w_down):
        g = _silu(x @ w_gate)
        u = x @ w_up
        return g * u @ w_down
    x = A_x
    mod = (_silu(c) @ w_mod).reshape(c.shape[0], 6, 1, -1)
    sa, ca, ga, sb, cb, gb = (mod[:, 0].clone(), mod[:, 1].clone(), mod[:, 2].clone(), mod[:, 3].clone(), mod[:, 4].clone(), mod[:, 5].clone())
    h = _layernorm(x, axis=-1) * (1 + ca) + sa
    x = x + ga * _A_ref(h, A_k_cache, A_v_cache, A_wq, A_wo)
    h = _layernorm(x, axis=-1) * (1 + cb) + sb
    x = x + gb * _B_ref(h, B_w_gate, B_w_up, B_w_down)
    return x
```

```python
import re

REG_RE = re.compile(r'(?<![\w.])(?:([vas])(\d+)|([vas])\[(\d+):(\d+)\]|(vcc|exec|m0|scc))(?![\w])')


def regs_of(tok):
    out = []
    for m in REG_RE.finditer(tok):
        if m.group(1):
            out.append((m.group(1), int(m.group(2))))
        elif m.group(3):
            for i in range(int(m.group(4)), int(m.group(5)) + 1):
                out.append((m.group(3), i))
        else:
            out.append((m.group(6), 0))
    return out


TRANS = ('v_exp_f32', 'v_log_f32', 'v_rcp_f32', 'v_rsq_f32', 'v_sqrt_f32', 'v_sin_f32', 'v_cos_f32')


class Inst:
    __slots__ = ('text', 'op', 'kind', 'rd', 'wr', 'srcc', 'srcab', 'tag', 'passes', 'dpp', 'wide')

    def __init__(self, text, tag=None):
        self.text = text
        self.tag = tag
        self.rd = []
        self.wr = []
        self.srcc = []
        self.srcab = []
        self.passes = 0
        self.dpp = False
        self.wide = False
        t = text.strip()
        sp = t.split(None, 1)
        op = sp[0]
        self.op = op
        rest = sp[1] if len(sp) > 1 else ''
        ops = [o.strip() for o in re.split(r',(?![^\[]*\])', rest)] if rest else []
        R = [regs_of(o) for o in ops]
        mo = re.search(r'offset:(\d+)', t)
        if mo:
            lim = 4096 if op.startswith('buffer') or op.startswith('global') else 65536
            assert int(mo.group(1)) < lim, 'offset out of range: ' + text
        allr = [r for x in R for r in x]
        if op.endswith(':') or op.startswith('.'):
            self.kind = 'label'
        elif op.startswith('v_mfma'):
            self.kind = 'mfma'
            self.passes = 8 if '32x32x16' in op else 4
            self.wr = R[0]
            self.srcab = R[1] + R[2]
            self.srcc = R[3]
            self.rd = self.srcab + self.srcc
        elif op.startswith('v_cmp'):
            self.kind = 'valu'
            self.wr = R[0]
            self.rd = [r for x in R[1:] for r in x]
        elif op.startswith('v_permlane'):
            self.kind = 'valu'
            self.wr = allr
            self.rd = allr
        elif op in ('v_add_co_u32', 'v_sub_co_u32', 'v_addc_co_u32', 'v_subb_co_u32', 'v_div_scale_f32'):
            self.kind = 'valu'
            self.wr = R[0] + R[1]
            self.rd = [r for x in R[2:] for r in x]
        elif op.startswith('v_'):
            self.kind = 'trans' if op.replace('_e32', '').replace('_e64', '') in TRANS else 'valu'
            self.wr = R[0]
            self.rd = [r for x in R[1:] for r in x]
            if op.startswith('v_fmac') or op.startswith('v_dot2c') or op.startswith('v_writelane'):
                self.rd = self.rd + R[0]
            if op.startswith('v_div_fmas'):
                self.rd = self.rd + [('vcc', 0)]
            if 'dpp' in op or 'row_' in t or 'quad_perm' in t or 'wave_' in t:
                self.dpp = True
                self.rd = self.rd + R[0]
        elif op.startswith('ds_read') or op.startswith('ds_bpermute') or op.startswith('ds_swizzle') or op.startswith('ds_permute'):
            self.kind = 'dsr'
            self.wr = R[0]
            self.rd = [r for x in R[1:] for r in x]
        elif op.startswith('ds_write'):
            self.kind = 'dsw'
            self.rd = allr
        elif op.startswith('buffer_load') and re.search(r'\blds\b', t):
            self.kind = 'dma'
            self.rd = allr + [('m0', 0)]
        elif op.startswith('buffer_load') or op.startswith('global_load'):
            self.kind = 'vld'
            self.wr = R[0]
            self.rd = [r for x in R[1:] for r in x]
        elif op.startswith('buffer_store') or op.startswith('global_store'):
            self.kind = 'vst'
            self.rd = allr
            self.wide = 'x4' in op or 'x3' in op
        elif op.startswith('global_atomic') or op.startswith('buffer_atomic'):
            self.kind = 'vst'
            self.rd = allr
        elif op.startswith('buffer_wbl2') or op.startswith('buffer_inv'):
            self.kind = 'vst'
        elif op.startswith('s_load') or op.startswith('s_memtime') or op.startswith('s_memrealtime'):
            self.kind = 'smem'
            self.wr = R[0]
            self.rd = [r for x in R[1:] for r in x]
        elif op == 's_waitcnt':
            self.kind = 'wait'
        elif op == 's_nop':
            self.kind = 'nop'
        elif op in ('s_barrier', 's_endpgm', 's_setprio', 's_sleep', 's_branch') or op.startswith('s_cbranch'):
            self.kind = 'ctrl'
            if 'vcc' in op:
                self.rd = [('vcc', 0)]
        elif op.startswith('s_cmp') or op.startswith('s_bitcmp'):
            self.kind = 'salu'
            self.rd = allr
        elif op in ('s_setpc_b64',):
            self.kind = 'ctrl'
            self.rd = allr
        elif op.startswith('s_'):
            self.kind = 'salu'
            self.wr = R[0] if R else []
            self.rd = [r for x in R[1:] for r in x]
            if 'saveexec' in op:
                self.wr = self.wr + [('exec', 0)]
        else:
            raise ValueError('unknown op: ' + text)


class Directive:
    def __init__(self, what, arg=None):
        self.what = what
        self.arg = arg
        self.kind = 'dir'


class Prog:
    def __init__(self):
        self.items = []

    def __call__(self, text, tag=None):
        for line in text.strip('\n').split('\n'):
            line = line.split(';')[0].strip()
            if line:
                self.items.append(Inst(line, tag))
        return self

    def add(self, it):
        if isinstance(it, (list, tuple)):
            for x in it:
                self.add(x)
        elif isinstance(it, str):
            self(it)
        else:
            self.items.append(it)

    def wait_vm_tag(self, tag):
        self.items.append(Directive('vmtag', tag))

    def wait_lgkm0(self):
        self.items.append(Directive('lgkm0'))

    def wait_vm0(self):
        self.items.append(Directive('vm0'))

    def reset(self):
        self.items.append(Directive('reset'))


def I(text, tag=None):
    return Inst(text, tag)


def WVM(tag):
    return Directive('vmtag', tag)


def weave(mfmas, *streams):
    n = len(mfmas)
    gaps = [[] for _ in range(n)]
    for st in streams:
        items, g0, g1 = st
        if g1 is None or g1 > n:
            g1 = n
        m = len(items)
        span = g1 - g0
        for j, it in enumerate(items):
            g = g0 + (j * span) // max(m, 1)
            gaps[g].append(it)
    out = []
    for k in range(n):
        out.append(mfmas[k])
        out.extend(gaps[k])
    return out


def finalize(prog, verbose=False):
    out = []
    lg = []
    vm = []
    pos = 0
    last_valu_w = {}
    last_trans_w = {}
    last_mfma_w = {}
    last_mfma_c = {}
    last_salu_m0 = -100
    last_store_data = {}
    stats = {'nop': 0, 'wait': 0}

    def emit(text, states=1):
        nonlocal pos
        out.append(text)
        pos += states

    def do_wait(vmn=None, lgn=None):
        parts = []
        if vmn is not None:
            parts.append('vmcnt(%d)' % min(vmn, 63))
        if lgn is not None:
            parts.append('lgkmcnt(%d)' % min(lgn, 15))
        emit('s_waitcnt ' + ' '.join(parts))
        stats['wait'] += 1

    for it in prog.items:
        if isinstance(it, Directive):
            if it.what == 'vmtag':
                idx = None
                for p, (d, tg) in enumerate(vm):
                    if tg == it.arg:
                        idx = p
                if idx is not None:
                    n = len(vm) - idx - 1
                    do_wait(vmn=n)
                    del vm[:idx + 1]
            elif it.what == 'lgkm0':
                if lg:
                    do_wait(lgn=0)
                    lg.clear()
            elif it.what == 'vm0':
                do_wait(vmn=0)
                vm.clear()
            elif it.what == 'reset':
                lg.clear()
                vm.clear()
            continue
        k = it.kind
        if k == 'label':
            out.append(it.text)
            continue
        if k == 'wait':
            m = re.search(r'vmcnt\((\d+)\)', it.text)
            if m:
                n = int(m.group(1))
                if len(vm) > n:
                    del vm[:len(vm) - n]
            m = re.search(r'lgkmcnt\((\d+)\)', it.text)
            if m:
                n = int(m.group(1))
                if len(lg) > n:
                    del lg[:len(lg) - n]
            emit(it.text)
            continue
        if k == 'nop':
            emit(it.text, int(it.text.split()[1], 0) + 1)
            continue
        touched = set(it.rd) | set(it.wr)
        vmn = lgn = None
        for p in range(len(vm) - 1, -1, -1):
            if vm[p][0] & touched:
                vmn = len(vm) - p - 1
                del vm[:p + 1]
                break
        for p in range(len(lg) - 1, -1, -1):
            if lg[p] & touched:
                lgn = len(lg) - p - 1
                del lg[:p + 1]
                break
        if vmn is not None or lgn is not None:
            do_wait(vmn, lgn)
        need = 0

        def req(p_prod, ws):
            nonlocal need
            need = max(need, p_prod + 1 + ws)

        isvalu = k in ('valu', 'trans')
        ismem = k in ('dsr', 'dsw', 'vld', 'vst', 'dma')
        if k == 'mfma':
            for r in it.rd:
                if r in last_valu_w:
                    req(last_valu_w[r], 2)
            for r in it.srcab:
                if r in last_mfma_w:
                    p, ps, D = last_mfma_w[r]
                    req(p, {4: 8, 8: 12}[ps])
            for r in it.srcc:
                if r in last_mfma_w:
                    p, ps, D = last_mfma_w[r]
                    if D == tuple(it.srcc) and ps == it.passes:
                        pass
                    else:
                        req(p, {4: 6, 8: 10}[ps])
            for r in it.wr:
                if r in last_mfma_w and r not in it.srcc:
                    p, ps, D = last_mfma_w[r]
                    req(p, {4: 6, 8: 10}[ps])
        if isvalu or ismem:
            for r in touched:
                if r in last_mfma_w:
                    p, ps, D = last_mfma_w[r]
                    req(p, {4: 8, 8: 12}[ps])
        if isvalu:
            for r in it.wr:
                if r in last_mfma_c:
                    p, ps = last_mfma_c[r]
                    req(p, {4: 3, 8: 7}[ps])
                if r in last_store_data:
                    req(last_store_data[r], 2)
            if k == 'valu':
                for r in it.rd:
                    if r in last_trans_w:
                        req(last_trans_w[r], 1)
            for r in it.rd:
                if r in last_valu_w:
                    if r[0] in ('s', 'vcc'):
                        req(last_valu_w[r], 4 if ('readlane' in it.op or 'writelane' in it.op or 'div_fmas' in it.op) else 2)
                    elif it.dpp or it.op.startswith('v_permlane'):
                        req(last_valu_w[r], 2)
                    elif 'readlane' in it.op or 'readfirstlane' in it.op:
                        req(last_valu_w[r], 1)
        if ismem:
            for r in it.rd:
                if r[0] == 's' and r in last_valu_w:
                    req(last_valu_w[r], 5)
            for r in it.wr:
                if r in last_store_data:
                    req(last_store_data[r], 1)
            if k == 'dma':
                req(last_salu_m0, 1)
        if k == 'salu' or k == 'ctrl':
            for r in it.rd:
                if r in last_valu_w and r[0] in ('s', 'vcc'):
                    req(last_valu_w[r], 1)
        while need > pos:
            n = min(need - pos, 16)
            emit('s_nop %d' % (n - 1), n)
            stats['nop'] += n
        p = pos
        emit(it.text)
        if isvalu:
            for r in it.wr:
                last_valu_w[r] = p
                last_mfma_w.pop(r, None)
                if k == 'trans':
                    last_trans_w[r] = p
                else:
                    last_trans_w.pop(r, None)
        elif k == 'mfma':
            D = tuple(it.wr)
            for r in it.wr:
                last_mfma_w[r] = (p, it.passes, D)
                last_valu_w.pop(r, None)
                last_trans_w.pop(r, None)
            for r in it.srcc:
                last_mfma_c[r] = (p, it.passes)
        elif k == 'salu':
            for r in it.wr:
                last_valu_w.pop(r, None)
                if r == ('m0', 0):
                    last_salu_m0 = p
        elif k == 'dsr':
            lg.append(set(it.wr))
            for r in it.wr:
                last_valu_w.pop(r, None)
                last_mfma_w.pop(r, None)
                last_trans_w.pop(r, None)
        elif k == 'dsw':
            lg.append(set())
        elif k == 'vld':
            vm.append((set(it.wr), it.tag))
            for r in it.wr:
                last_valu_w.pop(r, None)
                last_mfma_w.pop(r, None)
                last_trans_w.pop(r, None)
        elif k in ('vst', 'dma'):
            vm.append((set(), it.tag))
            if it.wide:
                for r in it.rd:
                    if r[0] in 'va':
                        last_store_data[r] = p
        elif k == 'smem':
            pass
    if verbose:
        print('finalize: %d lines, nop states %d, waits %d' % (len(out), stats['nop'], stats['wait']))
    return out


def kernel_text(name, lines, vgpr, agpr, sgpr=96):
    acc = (vgpr + 3) // 4 * 4
    nfv = acc + agpr if agpr else vgpr
    body = '\n'.join(lines)
    code = '.globl %s\n.p2align 8\n.type %s,@function\n%s:\n%s\n' % (name, name, name, body)
    kd = ('.amdhsa_kernel %s\n  .amdhsa_next_free_vgpr %d\n  .amdhsa_next_free_sgpr %d\n  .amdhsa_accum_offset %d\n'
          '  .amdhsa_group_segment_fixed_size 0\n  .amdhsa_kernarg_size 112\n  .amdhsa_user_sgpr_count 2\n'
          '  .amdhsa_user_sgpr_kernarg_segment_ptr 1\n  .amdhsa_system_sgpr_workgroup_id_x 1\n'
          '  .amdhsa_float_denorm_mode_32 3\n'
          '.end_amdhsa_kernel\n') % (name, nfv, sgpr, acc)
    return code, kd
```

```python
import sys
from asmfw import *

KA = dict(x=0, k=8, v=16, wq=24, wo=32, bx=40, wg=48, wu=56, wd=64, c=72, wmod=80, out=88, dbg=96, ws=104)
WS_MOD = 0
WS_H = 1 << 20
WS_O = 4 << 20
WS_X1 = 20 << 20
WS_ST = 23 << 20
WS_ACT = 24 << 20
SZ_H = 64 * 40 * 1024
SZ_O = 128 * 128 * 1024
SZ_ST = 2048 * 8 * 8
SZ_ACT = 128 * 54 * 1024

LOG2E = 1.4426950408889634


def f32hex(x):
    import struct
    return '0x%08x' % struct.unpack('<I', struct.pack('<f', x))[0]


def srd(p, d, base_lo, size, off=0):
    if off:
        p('s_add_u32 s%d, s%d, 0x%x' % (d, base_lo, off))
        p('s_addc_u32 s%d, s%d, 0' % (d + 1, base_lo + 1))
    else:
        p('s_mov_b32 s%d, s%d' % (d, base_lo))
        p('s_mov_b32 s%d, s%d' % (d + 1, base_lo + 1))
    p('s_mov_b32 s%d, 0x%x' % (d + 2, size))
    p('s_mov_b32 s%d, 0x20000' % (d + 3))


def vr(b, n):
    return 'v[%d:%d]' % (b, b + n - 1)


def ar(b, n):
    return 'a[%d:%d]' % (b, b + n - 1)


def bf16_round(p, dst, src):
    p('v_cvt_pk_bf16_f32 v%d, v%d, v%d' % (dst, src, src))
    p('v_and_b32 v%d, 0xffff0000, v%d' % (dst, dst))


def gen_mod():
    p = Prog()
    p('''
    s_cmp_ge_u32 s2, 256
    s_cbranch_scc1 L_mod_end
    s_and_b32 s3, s2, 7
    s_lshr_b32 s4, s2, 3
    s_and_b32 s5, s4, 3
    s_lshr_b32 s4, s4, 2
    s_lshl_b32 s4, s4, 3
    s_add_u32 s4, s4, s3
    s_cmp_ge_u32 s4, 60
    s_cbranch_scc1 L_mod_end
    s_lshl_b32 s4, s4, 2
    s_add_u32 s4, s4, s5
    s_lshl_b32 s30, s4, 5
    s_load_dwordx4 s[4:7], s[0:1], %d
    s_load_dwordx2 s[8:9], s[0:1], %d
    v_lshrrev_b32 v1, 6, v0
    v_and_b32 v2, 63, v0
    v_lshrrev_b32 v3, 1, v2
    v_mul_u32_u24 v4, 160, v1
    v_add_u32 v3, v3, v4
    v_lshlrev_b32 v5, 1, v3
    v_mul_u32_u24 v4, 7680, v3
    v_and_b32 v6, 1, v2
    v_lshlrev_b32 v6, 4, v6
    v_add3_u32 v4, v4, v6, s30
    s_waitcnt lgkmcnt(0)
    ''' % (KA['c'], KA['ws']))
    srd(p, 12, 4, 1280)
    srd(p, 16, 6, 640 * 7680)
    srd(p, 20, 8, 3840 * 4, WS_MOD)
    for m in range(5):
        p('buffer_load_ushort v%d, v5, s[12:15], 0 offen offset:%d' % (8 + m, 64 * m))
    for m in range(5):
        p('s_mov_b32 s31, %d' % (m * 32 * 7680))
        p('buffer_load_dwordx4 %s, v4, s[16:19], s31 offen' % vr(16 + 4 * m, 4))
    for m in range(5):
        c = 8 + m
        p('v_lshlrev_b32 v%d, 16, v%d' % (c, c))
        p('v_mul_f32 v40, %s, v%d' % (f32hex(-LOG2E), c))
        p('v_exp_f32 v40, v40')
        p('v_add_f32 v40, 1.0, v40')
        p('v_rcp_f32 v40, v40')
        p('v_mul_f32 v%d, v%d, v40' % (c, c))
        bf16_round(p, c, c)
    for m in range(5):
        for j in range(4):
            src = 16 + 4 * m + j
            p('v_lshlrev_b32 v40, 16, v%d' % src)
            p('v_and_b32 v41, 0xffff0000, v%d' % src)
            if m == 0:
                p('v_mul_f32 v%d, v40, v8' % (48 + 2 * j))
                p('v_mul_f32 v%d, v41, v8' % (49 + 2 * j))
            else:
                p('v_fmac_f32 v%d, v40, v%d' % (48 + 2 * j, 8 + m))
                p('v_fmac_f32 v%d, v41, v%d' % (49 + 2 * j, 8 + m))
    for mod in ('quad_perm:[2,3,0,1]', 'row_ror:4', 'row_ror:8'):
        for e in range(8):
            p('v_add_f32_dpp v%d, v%d, v%d %s row_mask:0xf bank_mask:0xf' % (48 + e, 48 + e, 48 + e, mod))
    p('''
    v_lshrrev_b32 v7, 4, v0
    v_lshlrev_b32 v7, 6, v7
    v_lshl_add_u32 v7, v6, 1, v7
    v_and_b32 v40, 14, v0
    v_cmp_eq_u32 vcc, 0, v40
    s_and_saveexec_b64 s[24:25], vcc
    ds_write_b128 v7, v[48:51]
    ds_write_b128 v7, v[52:55] offset:16
    s_mov_b64 exec, s[24:25]
    ''')
    p.wait_lgkm0()
    p('s_barrier')
    p('''
    v_and_b32 v40, 15, v0
    v_lshlrev_b32 v40, 2, v40
    ''')
    for g in range(16):
        p('ds_read_b32 v%d, v40 offset:%d' % (16 + g, 64 * g))
    for g in range(1, 16):
        p('v_add_f32 v16, v16, v%d' % (16 + g))
    bf16_round(p, 16, 16)
    p('''
    s_lshl_b32 s30, s30, 1
    v_add_u32 v40, s30, v40
    v_cmp_gt_u32 vcc, 16, v0
    s_and_saveexec_b64 s[24:25], vcc
    s_cbranch_execz L_mod_end
    buffer_store_dword v16, v40, s[20:23], 0 offen
    L_mod_end:
    s_endpgm
    ''')
    return kernel_text('mod_kernel', finalize(p), 64, 0)


def half_wave_sum(p, v, t):
    for mod in ('quad_perm:[1,0,3,2]', 'quad_perm:[2,3,0,1]', 'row_ror:4', 'row_ror:8'):
        p('v_add_f32_dpp v%d, v%d, v%d %s row_mask:0xf bank_mask:0xf' % (v, v, v, mod))
    p('v_mov_b32 v%d, v%d' % (t, v))
    p('v_permlane16_swap_b32 v%d, v%d' % (t, v))
    p('v_add_f32 v%d, v%d, v%d' % (v, v, t))


def gen_ln1():
    p = Prog()
    p('''
    s_cmp_ge_u32 s2, 256
    s_cbranch_scc1 L_ln1_end
    s_load_dwordx2 s[4:5], s[0:1], %d
    s_load_dwordx2 s[8:9], s[0:1], %d
    v_lshrrev_b32 v1, 5, v0
    s_lshl_b32 s3, s2, 3
    v_add_u32 v1, s3, v1
    v_and_b32 v2, 31, v0
    v_mul_u32_u24 v3, 1280, v1
    v_lshl_add_u32 v3, v2, 3, v3
    v_lshlrev_b32 v4, 4, v2
    s_waitcnt lgkmcnt(0)
    ''' % (KA['x'], KA['ws']))
    srd(p, 12, 4, 2048 * 1280)
    srd(p, 16, 8, 3840 * 4, WS_MOD)
    srd(p, 20, 8, SZ_H, WS_H)
    for m in range(5):
        p('buffer_load_dwordx2 %s, v3, s[12:15], 0 offen offset:%d' % (vr(8 + 2 * m, 2), 256 * m))
    for m in range(5):
        p('buffer_load_dwordx4 %s, v4, s[16:19], 0 offen offset:%d' % (vr(64 + 4 * m, 4), 512 * m))
        p('buffer_load_dwordx4 %s, v4, s[16:19], 0 offen offset:%d' % (vr(84 + 4 * m, 4), 2560 + 512 * m) if 2560 + 512 * m < 4096 else
          'buffer_load_dwordx4 %s, v4, s[16:19], s30 offen offset:%d' % (vr(84 + 4 * m, 4), 2560 + 512 * m - 2048))
        if m == 2:
            pass
    for m in range(5):
        for j in range(2):
            p('v_lshlrev_b32 v%d, 16, v%d' % (24 + 4 * m + 2 * j, 8 + 2 * m + j))
            p('v_and_b32 v%d, 0xffff0000, v%d' % (25 + 4 * m + 2 * j, 8 + 2 * m + j))
    p('v_add_f32 v5, v24, v25')
    for e in range(2, 20):
        p('v_add_f32 v5, v5, v%d' % (24 + e))
    half_wave_sum(p, 5, 6)
    p('v_mul_f32 v5, %s, v5' % f32hex(1.0 / 640))
    p('v_sub_f32 v44, v24, v5')
    p('v_mul_f32 v7, v44, v44')
    for e in range(1, 20):
        p('v_sub_f32 v44, v%d, v5' % (24 + e))
        p('v_fmac_f32 v7, v44, v44')
    half_wave_sum(p, 7, 6)
    p('v_mul_f32 v7, %s, v7' % f32hex(1.0 / 640))
    bf16_round(p, 5, 5)
    bf16_round(p, 7, 7)
    p('v_add_f32 v7, %s, v7' % f32hex(1e-5))
    bf16_round(p, 7, 7)
    p('v_sqrt_f32 v7, v7')
    bf16_round(p, 7, 7)
    p('v_rcp_f32 v7, v7')
    p('''
    v_lshrrev_b32 v44, 5, v1
    v_mul_u32_u24 v44, 40960, v44
    v_lshrrev_b32 v45, 2, v2
    v_lshl_add_u32 v44, v45, 10, v44
    v_bfe_u32 v45, v2, 1, 1
    v_lshl_add_u32 v44, v45, 9, v44
    v_and_b32 v45, 31, v1
    v_lshl_add_u32 v44, v45, 4, v44
    v_and_b32 v45, 1, v2
    v_lshl_add_u32 v44, v45, 3, v44
    ''')
    for m in range(5):
        for e in range(4):
            x = 24 + 4 * m + e
            p('v_sub_f32 v%d, v%d, v5' % (x, x))
            bf16_round(p, x, x)
            p('v_mul_f32 v%d, v%d, v7' % (x, x))
            bf16_round(p, x, x)
            p('v_add_f32 v46, 1.0, v%d' % (84 + 4 * m + e))
            bf16_round(p, 46, 46)
            p('v_mul_f32 v%d, v%d, v46' % (x, x))
            bf16_round(p, x, x)
            p('v_add_f32 v%d, v%d, v%d' % (x, x, 64 + 4 * m + e))
        p('v_cvt_pk_bf16_f32 v%d, v%d, v%d' % (48 + 2 * m, 24 + 4 * m, 25 + 4 * m))
        p('v_cvt_pk_bf16_f32 v%d, v%d, v%d' % (49 + 2 * m, 26 + 4 * m, 27 + 4 * m))
        p('s_mov_b32 s31, %d' % (8192 * m))
        p('buffer_store_dwordx2 %s, v44, s[20:23], s31 offen' % vr(48 + 2 * m, 2))
    p('''
    L_ln1_end:
    s_endpgm
    ''')
    items = p.items
    idx = next(i for i, it in enumerate(items) if isinstance(it, Inst) and 's30' in it.text)
    items.insert(idx, Inst('s_mov_b32 s30, 2048'))
    return kernel_text('ln1_kernel', finalize(p), 104, 0)


SM_THR = 2.0 ** 64


def gen_attn():
    p = Prog()
    MF = 'v_mfma_f32_32x32x16_bf16'
    QF = lambda qt, t: 16 + (qt * 8 + t) * 4
    QA = lambda qt, dt: 80 + (qt * 4 + dt) * 16
    S = lambda qt: 80 + qt * 16
    P = lambda qt, kk: 112 + (qt * 2 + kk) * 4
    NM = lambda qt: 144 + 16 * qt
    vKA = 208
    vTR = 216
    vDK = 228
    vDV = 232
    vDW = 233
    vH = 237
    vO = 239
    vLT = 240
    vLS = 242
    vT = 244
    HF = lambda f: (f % 48) * 4
    AW = lambda ks, dt: 192 + ((ks % 4) * 4 + dt) * 4
    OA = lambda qt, dt: (qt * 4 + dt) * 16
    KFR = lambda t: 128 + 4 * t
    VFR = lambda dt, kk: 160 + (dt * 2 + kk) * 4
    sW, sM0, sHD, sT, sKV, sWQ = 28, 29, 30, 31, 32, 33

    p('''
    s_cmp_ge_u32 s2, 256
    s_cbranch_scc1 L_attn_end
    s_load_dwordx4 s[36:39], s[0:1], %d
    s_load_dwordx2 s[40:41], s[0:1], %d
    s_load_dwordx2 s[42:43], s[0:1], %d
    v_lshrrev_b32 v1, 6, v0
    v_and_b32 v2, 63, v0
    v_readfirstlane_b32 s%d, v1
    s_and_b32 s3, s2, 7
    s_lshr_b32 s4, s2, 3
    s_and_b32 s5, s3, 1
    s_lshl_b32 s5, s5, 2
    s_and_b32 s6, s4, 3
    s_add_u32 s5, s5, s6
    s_lshr_b32 s3, s3, 1
    s_lshl_b32 s3, s3, 3
    s_lshr_b32 s4, s4, 2
    s_add_u32 s%d, s3, s4
    s_lshl_b32 s%d, s%d, 12
    ''' % (KA['k'], KA['wq'], KA['ws'], sW, sHD, sM0, sW))
    p('''
    v_lshrrev_b32 v3, 4, v2
    v_and_b32 v4, 15, v2
    v_lshrrev_b32 v5, 5, v2
    v_bfe_u32 v6, v2, 2, 2
    v_and_b32 v7, 3, v2
    ''')
    p('''
    v_lshlrev_b32 v8, 2, v3
    v_xor_b32 v8, v8, v4
    v_lshlrev_b32 v8, 4, v8
    v_lshl_add_u32 v9, v1, 4, v3
    v_lshl_add_u32 v%d, v9, 13, v8
    ''' % vDW)
    for j in range(1, 4):
        p('v_add_u32 v%d, %d, v%d' % (vDW + j, j * (32768 - 1024), vDW))
    p('''
    s_lshl_b32 s6, s5, 3
    s_lshl_b32 s7, s%d, 1
    s_add_u32 s6, s6, s7
    s_mul_i32 s6, s6, 40960
    v_lshlrev_b32 v10, 4, v2
    v_add_u32 v%d, s6, v10
    v_add_u32 v%d, 40960, v%d
    s_lshl_b32 s%d, s%d, 8
    s_waitcnt lgkmcnt(0)
    ''' % (sW, vH, vH + 1, vH, sWQ, sHD))
    srd(p, 8, 40, 640 * 8192)
    srd(p, 12, 36, 32 * 2048 * 256)
    srd(p, 16, 38, 32 * 2048 * 256)
    srd(p, 20, 42, SZ_H, WS_H)
    srd(p, 24, 42, SZ_O, WS_O)

    def dma_wq(c):
        L = [I('s_add_u32 m0, s%d, %d' % (sM0, c * 16384)),
             I('s_add_u32 s%d, s%d, %d' % (sT, sWQ, c * 64 * 8192))]
        for j in range(4):
            L.append(I('buffer_load_dwordx4 v%d, s[8:11], s%d offen offset:%d lds' % (vDW + j, sT, 1024 * j), tag='wq%d' % c))
        return L

    def dma_k(c):
        L = [I('s_add_u32 m0, s%d, %d' % (sM0, (c % 4) * 16384)),
             I('s_add_u32 s%d, s%d, %d' % (sT, sKV, c * 16384))]
        for j in range(4):
            L.append(I('buffer_load_dwordx4 v%d, s[12:15], s%d offen offset:%d lds' % (vDK + j, sT, 1024 * j), tag='k%d' % c))
        return L

    def dma_v(c):
        L = [I('s_add_u32 m0, s%d, %d' % (sM0, (4 + c % 4) * 16384)),
             I('s_add_u32 s%d, s%d, %d' % (sT, sKV, c * 16384))]
        for j in range(4):
            L.append(I('buffer_load_dwordx4 v%d, s[16:19], s%d offen offset:%d lds' % (vDV, sT, 1024 * j), tag='v%d' % c))
        return L

    def ld_h(c):
        L = [I('s_mov_b32 s34, %d' % (c * 4096))]
        for ks in range(4):
            for qt in range(2):
                f = (c * 4 + ks) * 2 + qt
                L.append(I('buffer_load_dwordx4 %s, v%d, s[20:23], s34 offen offset:%d' % (ar(HF(f), 4), vH + qt, 1024 * ks)))
        return L

    NPRE = 5
    for c in range(NPRE):
        p.add(dma_wq(c))
        p.add(ld_h(c))
    p('''
    v_lshl_add_u32 v8, v5, 3, v6
    v_lshlrev_b32 v8, 8, v8
    v_and_b32 v9, 1, v3
    v_lshl_add_u32 v8, v9, 5, v8
    v_and_b32 v9, 1, v7
    v_lshl_add_u32 v8, v9, 4, v8
    v_lshrrev_b32 v9, 1, v7
    v_lshl_add_u32 v8, v9, 3, v8
    ''')
    for dt in range(4):
        p('v_xor_b32 v9, %d, v6' % dt)
        p('v_lshl_add_u32 v%d, v9, 6, v8' % (vTR + dt))
        p('v_add_u32 v%d, 0x10000, v%d' % (vTR + 4 + dt, vTR + dt))
        p('v_add_u32 v%d, 0x20000, v%d' % (vTR + 8 + dt, vTR + dt))
    p('''
    v_and_b32 v8, 0x13, v2
    v_bfe_u32 v9, v2, 2, 1
    v_lshl_add_u32 v8, v9, 3, v8
    v_bfe_u32 v9, v2, 3, 1
    v_lshl_add_u32 v8, v9, 2, v8
    v_and_b32 v9, 15, v8
    v_xor_b32 v9, v9, v5
    v_lshlrev_b32 v8, 8, v8
    ''')
    for t in range(8):
        p('v_xor_b32 v10, %d, v9' % (2 * t))
        p('v_lshl_add_u32 v%d, v10, 4, v8' % (vKA + t))
    p('''
    v_lshlrev_b32 v8, 8, v3
    v_lshl_add_u32 v8, v1, 12, v8
    v_xor_b32 v9, v4, v3
    ''')
    for j in range(4):
        p('v_xor_b32 v10, %d, v9' % (4 * j))
        p('v_lshl_add_u32 v%d, v10, 4, v8' % (vDK + j))
    p('''
    v_lshlrev_b32 v10, 2, v3
    v_xor_b32 v10, v10, v4
    v_lshl_add_u32 v%d, v10, 4, v8
    s_lshl_b32 s%d, s%d, 19
    s_add_u32 s%d, s%d, %d
    ''' % (vDV, sKV, sHD, sKV, sKV, 1536 * 256))
    p('''
    s_lshl_b32 s6, s5, 4
    s_lshl_b32 s7, s%d, 2
    s_add_u32 s6, s6, s7
    s_lshl_b32 s6, s6, 7
    s_lshl_b32 s7, s%d, 2
    s_add_u32 s6, s6, s7
    s_lshl_b32 s6, s6, 10
    v_and_b32 v8, 1, v3
    v_lshlrev_b32 v8, 17, v8
    v_lshl_add_u32 v8, v5, 8, v8
    v_lshl_add_u32 v8, v4, 4, v8
    v_add_u32 v%d, s6, v8
    s_mov_b32 s35, 0x40000
    ''' % (sW, sHD, vO))

    def rd_w(c, ks):
        L = []
        g, so = c // 4, (c % 4) * 16384
        for dt in range(4):
            for a in range(2):
                L.append(I('ds_read_b64_tr_b16 %s, v%d offset:%d' % (ar(AW(ks, dt) + 2 * a, 2), vTR + 4 * g + dt, so + (16 * ks + 4 * a) * 256)))
        return L

    def mf_q(c, ks, qts=(0, 1)):
        L = []
        kk = c * 4 + ks
        for dt in range(4):
            for qt in qts:
                src = vr(QA(qt, dt), 16) if kk > 0 else '0'
                L.append(I('%s %s, %s, %s, %s' % (MF, vr(QA(qt, dt), 16), ar(AW(ks, dt), 4), ar(HF(kk * 2 + qt), 4), src)))
        return L

    def rd_k(s, t):
        c = s // 2
        return I('ds_read_b128 %s, v%d offset:%d' % (ar(KFR(t), 4), vKA + t, (c % 4) * 16384 + (s % 2) * 8192))

    def rd_v(s, dt, kk):
        c = s // 2
        return [I('ds_read_b64_tr_b16 %s, v%d offset:%d' % (ar(VFR(dt, kk) + 2 * a, 2), vTR + 4 + dt,
                                                            (c % 4) * 16384 + (s % 2) * 8192 + (16 * kk + 4 * a) * 256)) for a in range(2)]

    qscale = f32hex(128 ** -0.5 * LOG2E)

    def cvt_q(qt):
        L = []
        for dt in range(4):
            for t2 in range(2):
                b = QA(qt, dt) + 8 * t2
                for e in range(8):
                    L.append(I('v_mul_f32 v%d, %s, v%d' % (b + e, qscale, b + e)))
                for j in range(4):
                    L.append(I('v_cvt_pk_bf16_f32 v%d, v%d, v%d' % (QF(qt, 2 * dt + t2) + j, b + 2 * j, b + 2 * j + 1)))
        return L

    p.wait_vm_tag('wq0')
    p('s_barrier')
    p.add(rd_w(0, 0))
    p.add(rd_w(0, 1))
    for c in range(10):
        last = c == 9
        if not last:
            M = mf_q(c, 0) + mf_q(c, 1) + mf_q(c, 2) + mf_q(c, 3)
            st = [(rd_w(c, 2), 0, 8), (rd_w(c, 3), 8, 16),
                  ([WVM('wq%d' % (c + 1)), I('s_barrier')], 15, 16),
                  (rd_w(c + 1, 0), 16, 24), (rd_w(c + 1, 1), 24, 32)]
            ex = []
            if c + NPRE < 10:
                ex += dma_wq(c + NPRE)
                ex_h = ld_h(c + NPRE)
            else:
                ex_h = []
            fr = c - 1
            if 0 <= fr < 4:
                ex += dma_k(fr)
            elif 4 <= fr < 8:
                ex += dma_v(fr - 4)
            st.append((ex, 16, 28))
            st.append((ex_h, 20, 32))
            p.add(weave(M, *st))
        else:
            M0 = mf_q(c, 0, (0,)) + mf_q(c, 1, (0,)) + mf_q(c, 2, (0,)) + mf_q(c, 3, (0,))
            M1 = mf_q(c, 0, (1,)) + mf_q(c, 1, (1,)) + mf_q(c, 2, (1,)) + mf_q(c, 3, (1,))
            p.add(weave(M0, (rd_w(c, 2), 0, 4), (rd_w(c, 3), 4, 8),
                        ([WVM('k0'), WVM('v0'), I('s_barrier')], 10, 11)))
            p.add(weave(M1, (cvt_q(0), 1, 16), ([rd_k(0, t) for t in range(8)], 0, 16)))

    def mf_qk(h):
        s, qt = h // 2, h % 2
        L = []
        for t in range(8):
            src = vr(S(qt), 16) if t > 0 else ('0' if s == 0 else vr(NM(qt), 16))
            L.append(I('%s %s, %s, %s, %s' % (MF, vr(S(qt), 16), ar(KFR(t), 4), vr(QF(qt, t), 4), src)))
        return L

    def mf_pv(h):
        s, qt = h // 2, h % 2
        L = []
        for dt in range(4):
            for kk in range(2):
                src = ar(OA(qt, dt), 16) if (s > 0 or kk > 0) else '0'
                L.append(I('%s %s, %s, %s, %s' % (MF, ar(OA(qt, dt), 16), ar(VFR(dt, kk), 4), vr(P(qt, kk), 4), src)))
        return L

    def sm(h, sub=False):
        s, qt = h // 2, h % 2
        b = S(qt)
        L = []
        ls = vLS + qt
        for g in range(4):
            tb = vT + 4 * (g % 2)
            for e in range(4):
                r = b + 4 * g + e
                if sub:
                    L.append(I('v_add_f32 v%d, v%d, v%d' % (r, r, NM(qt))))
                L.append(I('v_exp_f32 v%d, v%d' % (tb + e, r)))
            if g == 0:
                L.append(I('v_add_f32 v%d, v%d, v%d' % (ls, tb, tb + 1)))
            else:
                L.append(I('v_add_f32 v%d, v%d, v%d' % (ls, ls, tb)))
                L.append(I('v_add_f32 v%d, v%d, v%d' % (ls, ls, tb + 1)))
            L.append(I('v_cvt_pk_bf16_f32 v%d, v%d, v%d' % (P(qt, g // 2) + 2 * (g % 2), tb, tb + 1)))
            L.append(I('v_add_f32 v%d, v%d, v%d' % (ls, ls, tb + 2)))
            L.append(I('v_add_f32 v%d, v%d, v%d' % (ls, ls, tb + 3)))
            L.append(I('v_cvt_pk_bf16_f32 v%d, v%d, v%d' % (P(qt, g // 2) + 2 * (g % 2) + 1, tb + 2, tb + 3)))
        return L

    def rowmax(qt, dst, tmp):
        b = S(qt)
        L = [I('v_max3_f32 v%d, v%d, v%d, v%d' % (dst, b, b + 1, b + 2))]
        for e in range(3, 15, 2):
            L.append(I('v_max3_f32 v%d, v%d, v%d, v%d' % (dst, dst, b + e, b + e + 1)))
        L.append(I('v_max_f32 v%d, v%d, v%d' % (dst, dst, b + 15)))
        L.append(I('v_mov_b32 v%d, v%d' % (tmp, dst)))
        L.append(I('v_permlane32_swap_b32 v%d, v%d' % (tmp, dst)))
        L.append(I('v_max_f32 v%d, v%d, v%d' % (dst, dst, tmp)))
        return L

    def first_max(qt):
        L = rowmax(qt, vT + 8, vT + 9)
        for e in range(16):
            L.append(I('v_sub_f32 v%d, 0, v%d' % (NM(qt) + e, vT + 8)))
        return L

    def check(h):
        qt = h % 2
        L = []
        if h >= 2:
            L.append(I('v_cmp_nge_f32 vcc, s44, v%d' % (vLS + qt)))
            L.append(I('s_cbranch_vccnz L_slow_%d' % h))
            L.append(I('L_back_%d:' % h))
            L.append(I('v_add_f32 v%d, v%d, v%d' % (vLT + qt, vLT + qt, vLS + qt)))
        else:
            L.append(I('v_mov_b32 v%d, v%d' % (vLT + qt, vLS + qt)))
        return L

    def finalize_q(qt):
        L = [I('v_mov_b32 v%d, v%d' % (vT + 8, vLT + qt)),
             I('v_permlane32_swap_b32 v%d, v%d' % (vT + 8, vLT + qt)),
             I('v_add_f32 v%d, v%d, v%d' % (vT + 8, vT + 8, vLT + qt)),
             I('v_rcp_f32 v%d, v%d' % (vT + 8, vT + 8))]
        n = 0
        for dt in range(4):
            for t2 in range(2):
                tb = 128 + 16 * (n % 4) if False else (176 + 12 * (n % 2))
                n += 1
                for e in range(8):
                    L.append(I('v_accvgpr_read_b32 v%d, a%d' % (tb + e, OA(qt, dt) + 8 * t2 + e)))
                for e in range(8):
                    L.append(I('v_mul_f32 v%d, v%d, v%d' % (tb + e, tb + e, vT + 8)))
                for j in range(4):
                    L.append(I('v_cvt_pk_bf16_f32 v%d, v%d, v%d' % (tb + 8 + j, tb + 2 * j, tb + 2 * j + 1)))
                L.append(I('buffer_store_dwordx4 %s, v%d, s[24:27], %s offen offset:%d' % (
                    vr(tb + 8, 4), vO, 's35' if qt else '0', dt * 1024 + t2 * 512)))
        return L

    p('s_mov_b32 s44, %s' % f32hex(SM_THR))
    p.add(weave(mf_qk(0), (cvt_q(1), 0, 8)))
    for n in range(0, 33):
        M = []
        st = []
        nq = 0
        if n + 1 < 32:
            M += mf_qk(n + 1)
            nq = 8
        if n - 1 >= 0:
            M += mf_pv(n - 1)
        tot = len(M)
        V = []
        if n < 32:
            if n < 2:
                V += first_max(n)
            V += sm(n, sub=(n < 2))
            V += check(n)
        else:
            V += finalize_q(0)
        g0 = 1 if (n == 0) else 0
        st.append((V, g0, tot))
        if n % 2 == 0:
            s = n // 2 + 1
            if s < 16:
                pre = []
                if s % 2 == 0:
                    c = s // 2
                    pre = [WVM('k%d' % c), WVM('v%d' % c), I('s_barrier')]
                    st.append((pre, 0, 1))
                    ex = []
                    if c + 3 < 8:
                        ex += dma_k(c + 3)
                    if c >= 2 and c + 2 < 8:
                        ex += dma_v(c + 2)
                    st.append((ex, 2, tot))
                st.append(([rd_k(s, t) for t in range(8)], 1, 9 if tot >= 9 else tot))
        if (n % 2 == 1 and n < 31) or n == 30:
            s = (n - 1) // 2 if n % 2 == 1 else 15
            R = []
            for dt in range(4):
                for kk in range(2):
                    R += rd_v(s, dt, kk)
            st.append((R, 0, 8) if n % 2 == 1 else (R, 8, 16))
        p.add(weave(M, *st))
    p.add(finalize_q(1))
    p('s_endpgm')
    for h in range(2, 32):
        p('L_slow_%d:' % h)
        p('s_call_b64 s[46:47], L_rescale_%d' % (h % 2))
        p('s_branch L_back_%d' % h)
    for qt in range(2):
        p('L_rescale_%d:' % qt)
        p('s_nop 15')
        p('s_nop 15')
        d, f = vT + 8, vT + 9
        p.add(rowmax(qt, d, f))
        p('v_max_f32 v%d, 0, v%d' % (d, d))
        p('v_sub_f32 v%d, 0, v%d' % (f, d))
        p('v_exp_f32 v%d, v%d' % (f, f))
        for e in range(16):
            p('v_sub_f32 v%d, v%d, v%d' % (S(qt) + e, S(qt) + e, d))
            p('v_sub_f32 v%d, v%d, v%d' % (NM(qt) + e, NM(qt) + e, d))
        p('v_mul_f32 v%d, v%d, v%d' % (vLT + qt, vLT + qt, f))
        for r in range(64):
            a = OA(qt, 0) + r
            p('v_accvgpr_read_b32 v%d, a%d' % (vT + 10, a))
            p('v_mul_f32 v%d, v%d, v%d' % (vT + 10, vT + 10, f))
            p('v_accvgpr_write_b32 a%d, v%d' % (a, vT + 10))
        p.add(sm(qt + 2))
        p('s_nop 3')
        p('s_setpc_b64 s[46:47]')
    p('L_attn_end:')
    p('s_endpgm')
    return kernel_text('attn_kernel', finalize(p, True), 256, 256)


def gen_gemm_n640(name, nkb, steps, wkey, b_off, b_size, final):
    p = Prog()
    MF = 'v_mfma_f32_16x16x32_bf16'
    D = 6
    NS = 8
    ACC = lambda qt, j: (qt * 5 + j) * 4
    BF = lambda i, qt: 64 + ((i % 7) * 4 + qt) * 4
    AF = lambda i, j: 176 + ((i % 2) * 5 + j) * 4
    vDW = 16
    vB = 21
    vTRA = 22
    sW, sM0, sKB, sKW, sT = 28, 29, 30, 31, 32
    E = 'L_%s_end' % name
    p('''
    s_cmp_ge_u32 s2, 256
    s_cbranch_scc1 %s
    s_load_dwordx2 s[36:37], s[0:1], %d
    s_load_dwordx2 s[38:39], s[0:1], %d
    s_load_dwordx2 s[40:41], s[0:1], %d
    v_lshrrev_b32 v1, 6, v0
    v_and_b32 v2, 63, v0
    v_readfirstlane_b32 s%d, v1
    s_and_b32 s3, s2, 7
    s_lshr_b32 s4, s2, 3
    s_lshr_b32 s5, s3, 1
    s_lshl_b32 s5, s5, 3
    s_lshr_b32 s6, s4, 2
    s_add_u32 s5, s5, s6
    s_and_b32 s3, s3, 1
    s_lshl_b32 s3, s3, 2
    s_and_b32 s4, s4, 3
    s_add_u32 s6, s3, s4
    ''' % (E, KA[wkey], KA['ws'], KA['out'] if final else KA['x'], sW))
    if steps * 4 == nkb:
        p('s_mul_i32 s%d, s%d, %d' % (sKB, sW, steps))
    else:
        p('s_mul_i32 s%d, s%d, %d' % (sKB, sW, steps))
        p('s_cmp_eq_u32 s%d, 3' % sW)
        p('s_cselect_b32 s7, 1, 0')
        p('s_sub_u32 s%d, s%d, s7' % (sKB, sKB))
    p('s_mul_i32 s%d, s%d, %d' % (sM0, sW, NS * 5120))
    for m in range(5):
        p('v_add_u32 v3, %d, v2' % (64 * m))
        p('v_mul_u32_u24 v4, 6554, v3')
        p('v_lshrrev_b32 v4, 16, v4')
        p('v_mul_u32_u24 v5, 10, v4')
        p('v_sub_u32 v5, v3, v5')
        p('v_and_b32 v6, 0x13, v4')
        p('v_bfe_u32 v7, v4, 2, 1')
        p('v_lshl_add_u32 v6, v7, 3, v6')
        p('v_bfe_u32 v7, v4, 3, 1')
        p('v_lshl_add_u32 v6, v7, 2, v6')
        p('v_mul_u32_u24 v6, 1280, v6')
        p('v_lshl_add_u32 v6, v5, 4, v6')
        p('v_subrev_u32 v%d, %d, v6' % (vDW + m, 1024 * (m % 4)))
    p('''
    s_mul_i32 s%d, s%d, 40960
    s_mul_i32 s7, s6, 160
    s_add_u32 s%d, s%d, s7
    s_mul_i32 s7, s5, %d
    s_add_u32 s7, s7, s%d
    s_lshl_b32 s7, s7, 10
    v_lshlrev_b32 v3, 4, v2
    v_add_u32 v%d, s7, v3
    s_waitcnt lgkmcnt(0)
    ''' % (sKW, sKB, sKW, sKW, 4 * nkb, sKB, vB))
    srd(p, 8, 36, nkb * 32 * 1280)
    srd(p, 12, 38, b_size, b_off)
    srd(p, 16, 38, 3840 * 4, WS_MOD)
    srd(p, 20, 38, SZ_H, WS_X1)
    srd(p, 24, 40, 2048 * 1280)
    if not final:
        srd(p, 44, 38, SZ_ST, WS_ST)
    for qt in range(1, 4):
        p('s_mov_b32 s%d, %d' % (48 + qt, qt * nkb * 1024))
    ragged = steps * 4 != nkb
    if ragged:
        p('s_cmp_ge_u32 s%d, 2' % sW)
        p('s_cselect_b32 s52, 0x40000000, 0')

    def loads(i):
        L = [I('s_add_u32 m0, s%d, %d' % (sM0, (i % NS) * 5120)),
             I('s_add_u32 s%d, s%d, %d' % (sT, sKW, i * 40960))]
        lastr = ragged and i == steps - 1
        if lastr:
            L.append(I('s_add_u32 s%d, s%d, s52' % (sT, sT)))
        for m in range(5):
            if m == 4:
                L.append(I('s_add_u32 m0, s%d, %d' % (sM0, (i % NS) * 5120 + 4096)))
            L.append(I('buffer_load_dwordx4 v%d, s[8:11], s%d offen offset:%d lds' % (vDW + m, sT, 1024 * (m % 4)), tag='w%d' % i))
        if i % 4 == 0 and i > 0:
            L.append(I('v_add_u32 v%d, 4096, v%d' % (vB, vB)))
        if lastr:
            L.append(I('v_add_u32 v%d, s52, v%d' % (vB, vB)))
        for qt in range(4):
            L.append(I('buffer_load_dwordx4 %s, v%d, s[12:15], %s offen offset:%d' % (
                vr(BF(i, qt), 4), vB, 's%d' % (48 + qt) if qt else '0', 1024 * (i % 4))))
        return L

    for i in range(min(D, steps)):
        p.add(loads(i))
    p('''
    v_bfe_u32 v3, v2, 2, 2
    v_bfe_u32 v4, v2, 4, 1
    v_lshl_add_u32 v3, v4, 2, v3
    v_bfe_u32 v4, v2, 5, 1
    v_lshl_add_u32 v3, v4, 4, v3
    v_mul_u32_u24 v3, 160, v3
    v_and_b32 v4, 3, v2
    v_lshl_add_u32 v3, v4, 3, v3
    v_add_u32 v%d, s%d, v3
    ''' % (vTRA, sM0))

    def rd_a(i):
        L = [WVM('w%d' % i)]
        for j in range(5):
            for a in range(2):
                L.append(I('ds_read_b64_tr_b16 %s, v%d offset:%d' % (vr(AF(i, j) + 2 * a, 2), vTRA, (i % NS) * 5120 + a * 8 * 160 + 32 * j)))
        return L

    def epi_loads():
        L = []
        L += [I('v_lshrrev_b32 v23, 2, v0'),
              I('s_lshl_b32 s7, s5, 6'),
              I('v_add_u32 v27, s7, v23'),
              I('v_and_b32 v28, 3, v0'),
              I('v_mul_u32_u24 v24, 1280, v27'),
              I('v_lshl_add_u32 v24, v28, 4, v24'),
              I('s_mul_i32 s7, s6, 160'),
              I('v_add_u32 v24, s7, v24'),
              I('s_mul_i32 s7, s6, 10'),
              I('v_add_u32 v29, s7, v28'),
              I('v_lshrrev_b32 v25, 5, v27'),
              I('v_mul_u32_u24 v25, 40960, v25'),
              I('v_lshl_add_u32 v25, v29, 9, v25'),
              I('v_and_b32 v30, 31, v27'),
              I('v_lshl_add_u32 v25, v30, 4, v25'),
              I('v_lshlrev_b32 v26, 5, v29'),
              I('v_cmp_gt_u32 vcc, 2, v28'),
              I('v_mov_b32 v31, 0x40000000'),
              I('v_cndmask_b32 v31, v31, 0, vcc') if False else I('v_cndmask_b32 v31, v31, v63, vcc'),
              ]
        return L

    p('v_mov_b32 v63, 0')
    p.add(epi_loads())
    gate_off = (5 if final else 2) * 640 * 4
    RES = 216
    GATE = 228

    def epi_fetch():
        L = []
        for rnd in range(3):
            if rnd == 2:
                L.append(I('v_add_u32 v32, v24, v31'))
                L.append(I('v_add_u32 v33, v25, v31'))
                L.append(I('v_add_u32 v34, v26, v31'))
            a24, a25, a26 = (24, 25, 26) if rnd < 2 else (32, 33, 34)
            if final:
                L.append(I('buffer_load_dwordx4 %s, v%d, s[20:23], 0 offen offset:%d' % (vr(RES + 4 * rnd, 4), a25, 2048 * (rnd % 2)) if rnd < 2 else
                           'buffer_load_dwordx4 %s, v%d, s[20:23], s53 offen' % (vr(RES + 4 * rnd, 4), a25)))
            else:
                L.append(I('buffer_load_dwordx4 %s, v%d, s[24:27], 0 offen offset:%d' % (vr(RES + 4 * rnd, 4), a24, 64 * rnd)))
            for hh in range(2):
                L.append(I('buffer_load_dwordx4 %s, v%d, s[16:19], s54 offen offset:%d' % (vr(GATE + 8 * rnd + 4 * hh, 4), a26, 128 * rnd + 16 * hh)))
        return L

    p('s_mov_b32 s53, 4096')
    p('s_mov_b32 s54, %d' % gate_off)
    p.add(rd_a(0))
    for i in range(steps):
        M = []
        for j in range(5):
            for qt in range(4):
                src = ar(ACC(qt, j), 4) if i > 0 else '0'
                M.append(I('%s %s, %s, %s, %s' % (MF, ar(ACC(qt, j), 4), vr(AF(i, j), 4), vr(BF(i, qt), 4), src)))
        st = []
        if i + 1 < steps:
            st.append((rd_a(i + 1), 2, 14))
        if i + D < steps:
            st.append((loads(i + D), 0, 20))
        if i + D == steps:
            st.append((epi_fetch(), 0, 20))
        p.add(weave(M, *st))
    p('s_barrier')
    p('''
    v_and_b32 v3, 15, v2
    v_mul_u32_u24 v3, 336, v3
    v_lshrrev_b32 v4, 4, v2
    v_lshl_add_u32 v3, v4, 4, v3
    s_mul_i32 s7, s%d, 21504
    v_add_u32 v3, s7, v3
    ''' % sW)
    for qt in range(4):
        for j in range(5):
            p('ds_write_b128 v3, %s offset:%d' % (ar(ACC(qt, j), 4), qt * 16 * 336 + 64 * j))
    p.wait_lgkm0()
    p('s_barrier')
    p('''
    v_mul_u32_u24 v3, 336, v23
    v_lshl_add_u32 v3, v28, 5, v3
    v_add_u32 v4, 43008, v3
    ''')
    X = 64
    TMP = 96
    for rnd in range(3):
        for w in range(4):
            for hh in range(2):
                dst = X + 8 * rnd + 4 * hh if w == 0 else TMP + ((rnd * 3 + w - 1) * 2 + hh) * 4
                p('ds_read_b128 %s, v%d offset:%d' % (vr(dst, 4), 3 if w < 2 else 4, (w % 2) * 21504 + 128 * rnd + 16 * hh))
    for rnd in range(3):
        for w in range(1, 4):
            for e in range(8):
                p('v_add_f32 v%d, v%d, v%d' % (X + 8 * rnd + e, X + 8 * rnd + e, TMP + (rnd * 3 + w - 1) * 8 + e))
        for e in range(8):
            x = X + 8 * rnd + e
            bf16_round(p, x, x)
            p('v_mul_f32 v%d, v%d, v%d' % (x, x, GATE + 8 * rnd + e))
            bf16_round(p, x, x)
            if e % 2 == 0:
                p('v_lshlrev_b32 v5, 16, v%d' % (RES + 4 * rnd + e // 2))
            else:
                p('v_and_b32 v5, 0xffff0000, v%d' % (RES + 4 * rnd + e // 2))
            p('v_add_f32 v%d, v%d, v5' % (x, x))
        for j in range(4):
            p('v_cvt_pk_bf16_f32 v%d, v%d, v%d' % (40 + 4 * rnd + j, X + 8 * rnd + 2 * j, X + 8 * rnd + 2 * j + 1))
        if final:
            a = 24 if rnd < 2 else 32
            p('buffer_store_dwordx4 %s, v%d, s[24:27], 0 offen offset:%d' % (vr(40 + 4 * rnd, 4), a, 64 * rnd))
        else:
            if rnd < 2:
                p('buffer_store_dwordx4 %s, v25, s[20:23], 0 offen offset:%d' % (vr(40 + 4 * rnd, 4), 2048 * rnd))
            else:
                p('buffer_store_dwordx4 %s, v33, s[20:23], s53 offen' % vr(40 + 4 * rnd, 4))
    if not final:
        for rnd in range(3):
            for j in range(4):
                p('v_lshlrev_b32 v%d, 16, v%d' % (X + 8 * rnd + 2 * j, 40 + 4 * rnd + j))
                p('v_and_b32 v%d, 0xffff0000, v%d' % (X + 8 * rnd + 2 * j + 1, 40 + 4 * rnd + j))
        p('v_add_f32 v5, v%d, v%d' % (X + 16, X + 17))
        for e in range(2, 8):
            p('v_add_f32 v5, v5, v%d' % (X + 16 + e))
        p('v_cmp_gt_u32 vcc, 2, v28')
        p('v_cndmask_b32 v5, 0, v5, vcc')
        for e in range(16):
            p('v_add_f32 v5, v5, v%d' % (X + e))
        for mod in ('quad_perm:[1,0,3,2]', 'quad_perm:[2,3,0,1]'):
            p('v_add_f32_dpp v5, v5, v5 %s row_mask:0xf bank_mask:0xf' % mod)
        p('v_mul_f32 v5, %s, v5' % f32hex(1.0 / 80))
        p('v_sub_f32 v7, v%d, v5' % (X + 16))
        p('v_mul_f32 v6, v7, v7')
        for e in range(1, 8):
            p('v_sub_f32 v7, v%d, v5' % (X + 16 + e))
            p('v_fmac_f32 v6, v7, v7')
        p('v_cndmask_b32 v6, 0, v6, vcc')
        for e in range(16):
            p('v_sub_f32 v7, v%d, v5' % (X + e))
            p('v_fmac_f32 v6, v7, v7')
        for mod in ('quad_perm:[1,0,3,2]', 'quad_perm:[2,3,0,1]'):
            p('v_add_f32_dpp v6, v6, v6 %s row_mask:0xf bank_mask:0xf' % mod)
        p('''
        v_mov_b32 v4, v5
        v_mov_b32 v5, v6
        v_lshlrev_b32 v3, 6, v27
        s_lshl_b32 s7, s6, 3
        v_add_u32 v3, s7, v3
        v_cmp_eq_u32 vcc, 0, v28
        s_and_saveexec_b64 s[56:57], vcc
        buffer_store_dwordx2 v[4:5], v3, s[44:47], 0 offen
        ''')
    p('%s:' % E)
    p('s_endpgm')
    return kernel_text(name + '_kernel', finalize(p, True), 256, 80)


def gen_ffn1():
    p = Prog()
    MF = 'v_mfma_f32_32x32x16_bf16'
    NCH = 10
    NSL = 4
    CONST = 4 * 32768
    ACC = lambda gu, ft: (gu * 4 + ft) * 16
    XF = lambda ks: 64 + 4 * ks
    AW = lambda ks, gu, ft: 128 + (((ks % 2) * 2 + gu) * 4 + ft) * 4
    CB = lambda ks: 224 + (ks % 2) * 16
    vDW = 16
    vTR = 20
    vX = 28
    vC = 29
    vRS, vMR = 30, 31
    vST = 14
    sW, sM0, sT, sF = 28, 29, 30, 31
    p('''
    s_cmp_ge_u32 s2, 224
    s_cbranch_scc1 L_ffn1_end
    s_load_dwordx4 s[36:39], s[0:1], %d
    s_load_dwordx2 s[40:41], s[0:1], %d
    v_lshrrev_b32 v1, 6, v0
    v_and_b32 v2, 63, v0
    v_readfirstlane_b32 s%d, v1
    s_and_b32 s3, s2, 7
    s_lshr_b32 s4, s2, 3
    s_and_b32 s5, s3, 3
    s_lshl_b32 s5, s5, 2
    s_and_b32 s6, s4, 3
    s_add_u32 s5, s5, s6
    s_lshr_b32 s3, s3, 2
    s_mul_i32 s3, s3, 7
    s_lshr_b32 s4, s4, 2
    s_add_u32 s6, s3, s4
    s_lshl_b32 s%d, s%d, 12
    s_lshl_b32 s%d, s6, 8
    v_lshrrev_b32 v3, 4, v2
    v_and_b32 v4, 15, v2
    v_lshrrev_b32 v5, 5, v2
    v_bfe_u32 v6, v2, 2, 2
    v_and_b32 v7, 3, v2
    ''' % (KA['wg'], KA['ws'], sW, sM0, sW, sF))
    p('''
    v_lshlrev_b32 v8, 2, v3
    v_xor_b32 v8, v8, v4
    v_lshlrev_b32 v8, 4, v8
    v_lshl_add_u32 v9, v1, 4, v3
    v_mul_u32_u24 v9, 3456, v9
    v_add_u32 v%d, v9, v8
    ''' % vDW)
    for j in range(1, 4):
        p('v_add_u32 v%d, %d, v%d' % (vDW + j, j * (4 * 3456 - 1024), vDW))
    p('''
    s_lshl_b32 s7, s5, 2
    s_add_u32 s7, s7, s%d
    s_mul_i32 s3, s7, 40960
    v_lshlrev_b32 v10, 4, v2
    v_add_u32 v%d, s3, v10
    s_lshl_b32 s7, s7, 11
    v_and_b32 v10, 31, v2
    v_lshlrev_b32 v10, 6, v10
    v_add_u32 v%d, s7, v10
    v_lshlrev_b32 v11, 4, v0
    s_waitcnt lgkmcnt(0)
    ''' % (sW, vX, vST))
    srd(p, 8, 36, 640 * 3456)
    srd(p, 12, 38, 640 * 3456)
    srd(p, 16, 40, 3840 * 4, WS_MOD)
    srd(p, 20, 40, SZ_H, WS_X1)
    srd(p, 24, 40, SZ_ACT, WS_ACT)
    srd(p, 44, 40, SZ_ST, WS_ST)

    def dma_w(c):
        L = [I('s_add_u32 s%d, s%d, %d' % (sT, sF, c * 64 * 3456))]
        for gu in range(2):
            L.append(I('s_add_u32 m0, s%d, %d' % (sM0, (c % NSL) * 32768 + gu * 16384)))
            for j in range(4):
                L.append(I('buffer_load_dwordx4 v%d, s[%d:%d], s%d offen offset:%d lds' % (vDW + j, 8 + 4 * gu, 11 + 4 * gu, sT, 1024 * j), tag='w%d' % c))
        return L

    def ld_x(k0, k1):
        L = []
        for ks in range(k0, k1):
            if ks % 4 == 0:
                L.append(I('s_mov_b32 s34, %d' % (ks * 1024)))
            L.append(I('buffer_load_dwordx4 %s, v%d, s[20:23], s34 offen offset:%d' % (vr(XF(ks), 4), vX, 1024 * (ks % 4))))
        return L

    for j in range(4):
        p('buffer_load_dwordx4 %s, v%d, s[44:47], 0 offen offset:%d' % (vr(32 + 4 * j, 4), vST, 16 * j))
    p('s_mov_b32 s34, %d' % (3 * 2560))
    p('buffer_load_dwordx4 v[48:51], v11, s[16:19], s34 offen')
    p('buffer_load_dwordx4 v[52:55], v11, s[16:19], s34 offen offset:2560')
    p.add(dma_w(0))
    p.add(ld_x(0, 8))
    p.add(dma_w(1))
    p.add(ld_x(8, 20))
    p.add(dma_w(2))
    p.add(ld_x(20, 32))
    p('''
    v_lshl_add_u32 v8, v5, 3, v6
    v_lshlrev_b32 v8, 8, v8
    v_and_b32 v9, 1, v3
    v_lshl_add_u32 v8, v9, 5, v8
    v_and_b32 v9, 1, v7
    v_lshl_add_u32 v8, v9, 4, v8
    v_lshrrev_b32 v9, 1, v7
    v_lshl_add_u32 v8, v9, 3, v8
    ''')
    for ft in range(4):
        p('v_xor_b32 v9, %d, v6' % ft)
        p('v_lshl_add_u32 v%d, v9, 6, v8' % (vTR + ft))
        p('v_add_u32 v%d, 0x10000, v%d' % (vTR + 4 + ft, vTR + ft))
    for e in range(4):
        p('v_add_f32 v%d, 1.0, v%d' % (52 + e, 52 + e))
        bf16_round(p, 52 + e, 52 + e)
    p('''
    v_lshrrev_b32 v8, 1, v0
    v_lshlrev_b32 v8, 6, v8
    v_and_b32 v9, 1, v0
    v_lshl_add_u32 v8, v9, 4, v8
    v_add_u32 v8, %d, v8
    v_cmp_gt_u32 vcc, 160, v0
    s_and_saveexec_b64 s[56:57], vcc
    ds_write_b128 v8, v[52:55]
    ds_write_b128 v8, v[48:51] offset:32
    s_mov_b64 exec, s[56:57]
    v_lshlrev_b32 v%d, 6, v5
    v_add_u32 v%d, %d, v%d
    ''' % (CONST, vC, vC, CONST, vC))
    p('v_add_f32 v8, v32, v34')
    for j in range(2, 8):
        p('v_add_f32 v8, v8, v%d' % (32 + 2 * j))
    p('v_mul_f32 v8, 0.125, v8' if False else 'v_mul_f32 v8, %s, v8' % f32hex(0.125))
    p('v_add_f32 v9, v33, v35')
    for j in range(2, 8):
        p('v_add_f32 v9, v9, v%d' % (33 + 2 * j))
    p('v_sub_f32 v10, v32, v8')
    p('v_mul_f32 v12, v10, v10')
    for j in range(1, 8):
        p('v_sub_f32 v10, v%d, v8' % (32 + 2 * j))
        p('v_fmac_f32 v12, v10, v10')
    p('v_mov_b32 v10, %s' % f32hex(80.0))
    p('v_fmac_f32 v9, v12, v10')
    p('v_mov_b32 v10, %s' % f32hex(1e-5))
    p('v_fmac_f32 v10, %s, v9' % f32hex(1.0 / 640))
    p('v_rsq_f32 v%d, v10' % vRS)
    p('v_mul_f32 v%d, v8, v%d' % (vMR, vRS))
    p('v_sub_f32 v%d, 0, v%d' % (vMR, vMR))

    def rd_w(kk):
        c, ks = kk // 4, kk % 4
        sl = c % NSL
        L = []
        for gu in range(2):
            for ft in range(4):
                for a in range(2):
                    L.append(I('ds_read_b64_tr_b16 %s, v%d offset:%d' % (ar(AW(kk, gu, ft) + 2 * a, 2), vTR + 4 * (sl // 2) + ft,
                                                                         (sl % 2) * 32768 + gu * 16384 + (16 * ks + 4 * a) * 256)))
        return L

    def rd_c(kk):
        return [I('ds_read_b128 %s, v%d offset:%d' % (vr(CB(kk) + 4 * j, 4), vC, kk * 128 + 16 * j)) for j in range(4)]

    def norm(kk):
        L = []
        x = XF(kk)
        cb = CB(kk)
        for j in range(4):
            t = 32 + 2 * (j % 2) + 4 * (kk % 2)
            L.append(I('v_lshlrev_b32 v%d, 16, v%d' % (t, x + j)))
            L.append(I('v_and_b32 v%d, 0xffff0000, v%d' % (t + 1, x + j)))
            L.append(I('v_fma_f32 v%d, v%d, v%d, v%d' % (t, t, vRS, vMR)))
            L.append(I('v_fma_f32 v%d, v%d, v%d, v%d' % (t + 1, t + 1, vRS, vMR)))
            L.append(I('v_fma_f32 v%d, v%d, v%d, v%d' % (t, t, cb + 2 * j, cb + 8 + 2 * j)))
            L.append(I('v_fma_f32 v%d, v%d, v%d, v%d' % (t + 1, t + 1, cb + 2 * j + 1, cb + 8 + 2 * j + 1)))
            L.append(I('v_cvt_pk_bf16_f32 v%d, v%d, v%d' % (x + j, t, t + 1)))
        return L

    p.wait_lgkm0()
    p.wait_vm_tag('w0')
    p('s_barrier')
    p.add(rd_c(0))
    p.add(rd_w(0))
    p.add(rd_c(1))
    p.add(norm(0))
    for kk in range(40):
        c, ks = kk // 4, kk % 4
        M = []
        for gu in range(2):
            for ft in range(4):
                src = ar(ACC(gu, ft), 16) if kk > 0 else '0'
                M.append(I('%s %s, %s, %s, %s' % (MF, ar(ACC(gu, ft), 16), ar(AW(kk, gu, ft), 4), vr(XF(kk), 4), src)))
        st = []
        if kk + 1 < 40:
            pre = []
            if ks == 3:
                pre = [WVM('w%d' % (c + 1)), I('s_barrier')]
            st.append((pre + rd_w(kk + 1), 0, 8))
            st.append((norm(kk + 1), 0, 8))
            if kk + 2 < 40:
                st.append((rd_c(kk + 2), 4, 8))
        if ks == 0 and c >= 1 and c + 2 < NCH:
            st.append((dma_w(c + 2), 0, 8))
        if kk == 0:
            st.append((ld_x(32, 40), 0, 8))
        p.add(weave(M, *st))
    p('''
    s_lshl_b32 s7, s5, 3
    s_lshl_b32 s3, s%d, 1
    s_add_u32 s7, s7, s3
    s_mul_i32 s7, s7, 54
    s_lshl_b32 s3, s6, 2
    s_add_u32 s7, s7, s3
    s_lshl_b32 s7, s7, 10
    v_and_b32 v8, 1, v3
    v_mul_u32_u24 v8, %d, v8
    v_lshl_add_u32 v8, v5, 8, v8
    v_lshl_add_u32 v8, v4, 4, v8
    v_add_u32 v8, s7, v8
    s_cmp_eq_u32 s6, 13
    s_cselect_b32 s33, 0x40000000, 0
    v_add_u32 v9, s33, v8
    ''' % (sW, 54 * 1024))
    n = 0
    for ft in range(4):
        for t2 in range(2):
            g, u, o = 64 + 32 * (n % 2), 72 + 32 * (n % 2), 88 + 32 * (n % 2)
            tt = 80 + 32 * (n % 2)
            n += 1
            for e in range(8):
                p('v_accvgpr_read_b32 v%d, a%d' % (g + e, ACC(0, ft) + 8 * t2 + e))
                p('v_accvgpr_read_b32 v%d, a%d' % (u + e, ACC(1, ft) + 8 * t2 + e))
            for e in range(8):
                p('v_mul_f32 v%d, %s, v%d' % (tt + e, f32hex(-LOG2E), g + e))
            for e in range(8):
                p('v_exp_f32 v%d, v%d' % (tt + e, tt + e))
            for e in range(8):
                p('v_add_f32 v%d, 1.0, v%d' % (tt + e, tt + e))
            for e in range(8):
                p('v_rcp_f32 v%d, v%d' % (tt + e, tt + e))
            for e in range(8):
                p('v_mul_f32 v%d, v%d, v%d' % (g + e, g + e, u + e))
            for e in range(8):
                p('v_mul_f32 v%d, v%d, v%d' % (g + e, g + e, tt + e))
            for j in range(4):
                p('v_cvt_pk_bf16_f32 v%d, v%d, v%d' % (o + j, g + 2 * j, g + 2 * j + 1))
            p('buffer_store_dwordx4 %s, v%d, s[24:27], 0 offen offset:%d' % (vr(o, 4), 8 if ft < 2 else 9, ft * 1024 + t2 * 512))
    p('L_ffn1_end:')
    p('s_endpgm')
    return kernel_text('ffn1_kernel', finalize(p, True), 256, 192)


def main():
    ks = []
    ks.append(('mod_kernel', 256, 256, 1024, gen_mod()))
    ks.append(('ln1_kernel', 256, 256, 0, gen_ln1()))
    ks.append(('attn_kernel', 256, 256, 163840, gen_attn()))
    ks.append(('wo_kernel', 256, 256, 163840, gen_gemm_n640('wo', 128, 32, 'wo', WS_O, SZ_O, False)))
    ks.append(('ffn1_kernel', 224, 256, 4 * 32768 + 5120, gen_ffn1()))
    ks.append(('down_kernel', 256, 256, 163840, gen_gemm_n640('down', 54, 14, 'wd', WS_ACT, SZ_ACT, True)))
    out = []
    for name, g, b, lds, _ in ks:
        out.append('; @launch kernel=%s grid=(%d,1,1) block=(%d,1,1) lds=%d' % (name, g, b, lds))
    out.append('.amdgcn_target "amdgcn-amd-amdhsa--gfx950"')
    out.append('.text')
    for k in ks:
        out.append(k[4][0])
    out.append('.section .rodata,"a"')
    for k in ks:
        out.append('.p2align 6')
        out.append(k[4][1])
    path = sys.argv[1] if len(sys.argv) > 1 else 'adaLN_cond__sliding_block_cached__swiglu_ffn__prompt.s'
    open(path, 'w').write('\n'.join(out))
    print('wrote', path, sum(len(x) for x in out), 'bytes')


if __name__ == '__main__':
    main()
```

```python
import re

REG_RE = re.compile(r'(?<![\w.])(?:([vas])(\d+)|([vas])\[(\d+):(\d+)\]|(vcc|exec|m0|scc))(?![\w])')


def regs_of(tok):
    out = []
    for m in REG_RE.finditer(tok):
        if m.group(1):
            out.append((m.group(1), int(m.group(2))))
        elif m.group(3):
            for i in range(int(m.group(4)), int(m.group(5)) + 1):
                out.append((m.group(3), i))
        else:
            out.append((m.group(6), 0))
    return out


TRANS = ('v_exp_f32', 'v_log_f32', 'v_rcp_f32', 'v_rsq_f32', 'v_sqrt_f32', 'v_sin_f32', 'v_cos_f32')


class Inst:
    __slots__ = ('text', 'op', 'kind', 'rd', 'wr', 'srcc', 'srcab', 'tag', 'passes', 'dpp', 'wide')

    def __init__(self, text, tag=None):
        self.text = text
        self.tag = tag
        self.rd = []
        self.wr = []
        self.srcc = []
        self.srcab = []
        self.passes = 0
        self.dpp = False
        self.wide = False
        t = text.strip()
        sp = t.split(None, 1)
        op = sp[0]
        self.op = op
        rest = sp[1] if len(sp) > 1 else ''
        ops = [o.strip() for o in re.split(r',(?![^\[]*\])', rest)] if rest else []
        R = [regs_of(o) for o in ops]
        mo = re.search(r'offset:(\d+)', t)
        if mo:
            lim = 4096 if op.startswith('buffer') or op.startswith('global') else 65536
            assert int(mo.group(1)) < lim, 'offset out of range: ' + text
        allr = [r for x in R for r in x]
        if op.endswith(':') or op.startswith('.'):
            self.kind = 'label'
        elif op.startswith('v_mfma'):
            self.kind = 'mfma'
            self.passes = 8 if '32x32x16' in op else 4
            self.wr = R[0]
            self.srcab = R[1] + R[2]
            self.srcc = R[3]
            self.rd = self.srcab + self.srcc
        elif op.startswith('v_cmp'):
            self.kind = 'valu'
            self.wr = R[0]
            self.rd = [r for x in R[1:] for r in x]
        elif op.startswith('v_permlane'):
            self.kind = 'valu'
            self.wr = allr
            self.rd = allr
        elif op in ('v_add_co_u32', 'v_sub_co_u32', 'v_addc_co_u32', 'v_subb_co_u32', 'v_div_scale_f32'):
            self.kind = 'valu'
            self.wr = R[0] + R[1]
            self.rd = [r for x in R[2:] for r in x]
        elif op.startswith('v_'):
            self.kind = 'trans' if op.replace('_e32', '').replace('_e64', '') in TRANS else 'valu'
            self.wr = R[0]
            self.rd = [r for x in R[1:] for r in x]
            if op.startswith('v_fmac') or op.startswith('v_dot2c') or op.startswith('v_writelane'):
                self.rd = self.rd + R[0]
            if op.startswith('v_div_fmas'):
                self.rd = self.rd + [('vcc', 0)]
            if 'dpp' in op or 'row_' in t or 'quad_perm' in t or 'wave_' in t:
                self.dpp = True
                self.rd = self.rd + R[0]
        elif op.startswith('ds_read') or op.startswith('ds_bpermute') or op.startswith('ds_swizzle') or op.startswith('ds_permute'):
            self.kind = 'dsr'
            self.wr = R[0]
            self.rd = [r for x in R[1:] for r in x]
        elif op.startswith('ds_write'):
            self.kind = 'dsw'
            self.rd = allr
        elif op.startswith('buffer_load') and re.search(r'\blds\b', t):
            self.kind = 'dma'
            self.rd = allr + [('m0', 0)]
        elif op.startswith('buffer_load') or op.startswith('global_load'):
            self.kind = 'vld'
            self.wr = R[0]
            self.rd = [r for x in R[1:] for r in x]
        elif op.startswith('buffer_store') or op.startswith('global_store'):
            self.kind = 'vst'
            self.rd = allr
            self.wide = 'x4' in op or 'x3' in op
        elif op.startswith('global_atomic') or op.startswith('buffer_atomic'):
            self.kind = 'vst'
            self.rd = allr
        elif op.startswith('buffer_wbl2') or op.startswith('buffer_inv'):
            self.kind = 'vst'
        elif op.startswith('s_load') or op.startswith('s_memtime') or op.startswith('s_memrealtime'):
            self.kind = 'smem'
            self.wr = R[0]
            self.rd = [r for x in R[1:] for r in x]
        elif op == 's_waitcnt':
            self.kind = 'wait'
        elif op == 's_nop':
            self.kind = 'nop'
        elif op in ('s_barrier', 's_endpgm', 's_setprio', 's_sleep', 's_branch') or op.startswith('s_cbranch'):
            self.kind = 'ctrl'
            if 'vcc' in op:
                self.rd = [('vcc', 0)]
        elif op.startswith('s_cmp') or op.startswith('s_bitcmp'):
            self.kind = 'salu'
            self.rd = allr
        elif op in ('s_setpc_b64',):
            self.kind = 'ctrl'
            self.rd = allr
        elif op.startswith('s_'):
            self.kind = 'salu'
            self.wr = R[0] if R else []
            self.rd = [r for x in R[1:] for r in x]
            if 'saveexec' in op:
                self.wr = self.wr + [('exec', 0)]
        else:
            raise ValueError('unknown op: ' + text)


class Directive:
    def __init__(self, what, arg=None):
        self.what = what
        self.arg = arg
        self.kind = 'dir'


class Prog:
    def __init__(self):
        self.items = []

    def __call__(self, text, tag=None):
        for line in text.strip('\n').split('\n'):
            line = line.split(';')[0].strip()
            if line:
                self.items.append(Inst(line, tag))
        return self

    def add(self, it):
        if isinstance(it, (list, tuple)):
            for x in it:
                self.add(x)
        elif isinstance(it, str):
            self(it)
        else:
            self.items.append(it)

    def wait_vm_tag(self, tag):
        self.items.append(Directive('vmtag', tag))

    def wait_lgkm0(self):
        self.items.append(Directive('lgkm0'))

    def wait_vm0(self):
        self.items.append(Directive('vm0'))

    def reset(self):
        self.items.append(Directive('reset'))


def I(text, tag=None):
    return Inst(text, tag)


def WVM(tag):
    return Directive('vmtag', tag)


def weave(mfmas, *streams):
    n = len(mfmas)
    gaps = [[] for _ in range(n)]
    for st in streams:
        items, g0, g1 = st
        if g1 is None or g1 > n:
            g1 = n
        m = len(items)
        span = g1 - g0
        for j, it in enumerate(items):
            g = g0 + (j * span) // max(m, 1)
            gaps[g].append(it)
    out = []
    for k in range(n):
        out.append(mfmas[k])
        out.extend(gaps[k])
    return out


LG_SAFE = 160


def finalize(prog, verbose=False):
    out = []
    lg = []
    lgt = []
    mt = 0
    vm = []
    pos = 0
    last_valu_w = {}
    last_trans_w = {}
    last_mfma_w = {}
    last_mfma_c = {}
    last_salu_m0 = -100
    last_store_data = {}
    stats = {'nop': 0, 'wait': 0}
    seen_tags = set()

    def emit(text, states=1):
        nonlocal pos
        out.append(text)
        pos += states

    def do_wait(vmn=None, lgn=None):
        parts = []
        if vmn is not None:
            parts.append('vmcnt(%d)' % min(vmn, 63))
        if lgn is not None:
            parts.append('lgkmcnt(%d)' % min(lgn, 15))
        emit('s_waitcnt ' + ' '.join(parts))
        stats['wait'] += 1

    for it in prog.items:
        if isinstance(it, Directive):
            if it.what == 'vmtag':
                assert it.arg in seen_tags, 'wait for tag never issued: %s' % it.arg
                idx = None
                for p, (d, tg) in enumerate(vm):
                    if tg == it.arg:
                        idx = p
                if idx is not None:
                    n = len(vm) - idx - 1
                    do_wait(vmn=n)
                    del vm[:idx + 1]
            elif it.what == 'lgkm0':
                if lg:
                    do_wait(lgn=0)
                    lg.clear()
                    lgt.clear()
            elif it.what == 'vm0':
                do_wait(vmn=0)
                vm.clear()
            elif it.what == 'reset':
                lg.clear()
                lgt.clear()
                vm.clear()
            continue
        k = it.kind
        if k == 'label':
            out.append(it.text)
            continue
        if k == 'wait':
            m = re.search(r'vmcnt\((\d+)\)', it.text)
            if m:
                n = int(m.group(1))
                if len(vm) > n:
                    del vm[:len(vm) - n]
            m = re.search(r'lgkmcnt\((\d+)\)', it.text)
            if m:
                n = int(m.group(1))
                if len(lg) > n:
                    del lgt[:len(lg) - n]
                    del lg[:len(lg) - n]
            emit(it.text)
            continue
        if k == 'nop':
            emit(it.text, int(it.text.split()[1], 0) + 1)
            continue
        touched = set(it.rd) | set(it.wr)
        vmn = lgn = None
        for p in range(len(vm) - 1, -1, -1):
            if vm[p][0] & touched:
                vmn = len(vm) - p - 1
                del vm[:p + 1]
                break
        for p in range(len(lg) - 1, -1, -1):
            if lg[p] & touched:
                while p + 1 < len(lg) and lgt[p + 1] <= mt - LG_SAFE:
                    p += 1
                lgn = len(lg) - p - 1
                del lg[:p + 1]
                del lgt[:p + 1]
                break
        if vmn is not None or lgn is not None:
            do_wait(vmn, lgn)
        need = 0

        def req(p_prod, ws):
            nonlocal need
            need = max(need, p_prod + 1 + ws)

        isvalu = k in ('valu', 'trans')
        ismem = k in ('dsr', 'dsw', 'vld', 'vst', 'dma')
        if k == 'mfma':
            for r in it.rd:
                if r in last_valu_w:
                    req(last_valu_w[r], 2)
            for r in it.srcab:
                if r in last_mfma_w:
                    p, ps, D = last_mfma_w[r]
                    req(p, {4: 8, 8: 12}[ps])
            for r in it.srcc:
                if r in last_mfma_w:
                    p, ps, D = last_mfma_w[r]
                    if D == tuple(it.srcc) and ps == it.passes:
                        pass
                    else:
                        req(p, {4: 6, 8: 10}[ps])
            for r in it.wr:
                if r in last_mfma_w and r not in it.srcc:
                    p, ps, D = last_mfma_w[r]
                    req(p, {4: 6, 8: 10}[ps])
        if isvalu or ismem:
            for r in touched:
                if r in last_mfma_w:
                    p, ps, D = last_mfma_w[r]
                    req(p, {4: 8, 8: 12}[ps])
        if isvalu:
            for r in it.wr:
                if r in last_mfma_c:
                    p, ps = last_mfma_c[r]
                    req(p, {4: 3, 8: 7}[ps])
                if r in last_store_data:
                    req(last_store_data[r], 2)
            if k == 'valu':
                for r in it.rd:
                    if r in last_trans_w:
                        req(last_trans_w[r], 1)
            for r in it.rd:
                if r in last_valu_w:
                    if r[0] in ('s', 'vcc'):
                        req(last_valu_w[r], 4 if ('readlane' in it.op or 'writelane' in it.op or 'div_fmas' in it.op) else 2)
                    elif it.dpp or it.op.startswith('v_permlane'):
                        req(last_valu_w[r], 2)
                    elif 'readlane' in it.op or 'readfirstlane' in it.op:
                        req(last_valu_w[r], 1)
        if ismem:
            for r in it.rd:
                if r[0] == 's' and r in last_valu_w:
                    req(last_valu_w[r], 5)
            for r in it.wr:
                if r in last_store_data:
                    req(last_store_data[r], 1)
            if k == 'dma':
                req(last_salu_m0, 1)
        if k == 'salu' or k == 'ctrl':
            for r in it.rd:
                if r in last_valu_w and r[0] in ('s', 'vcc'):
                    req(last_valu_w[r], 1)
        while need > pos:
            n = min(need - pos, 16)
            emit('s_nop %d' % (n - 1), n)
            stats['nop'] += n
        p = pos
        emit(it.text)
        if it.tag is not None:
            seen_tags.add(it.tag)
        if isvalu:
            for r in it.wr:
                last_valu_w[r] = p
                last_mfma_w.pop(r, None)
                if k == 'trans':
                    last_trans_w[r] = p
                else:
                    last_trans_w.pop(r, None)
        elif k == 'mfma':
            mt += 4 * it.passes
            D = tuple(it.wr)
            for r in it.wr:
                last_mfma_w[r] = (p, it.passes, D)
                last_valu_w.pop(r, None)
                last_trans_w.pop(r, None)
            for r in it.srcc:
                last_mfma_c[r] = (p, it.passes)
        elif k == 'salu':
            for r in it.wr:
                last_valu_w.pop(r, None)
                if r == ('m0', 0):
                    last_salu_m0 = p
        elif k == 'dsr':
            lg.append(set(it.wr))
            lgt.append(mt)
            for r in it.wr:
                last_valu_w.pop(r, None)
                last_mfma_w.pop(r, None)
                last_trans_w.pop(r, None)
        elif k == 'dsw':
            lg.append(set())
            lgt.append(mt)
        elif k == 'vld':
            vm.append((set(it.wr), it.tag))
            for r in it.wr:
                last_valu_w.pop(r, None)
                last_mfma_w.pop(r, None)
                last_trans_w.pop(r, None)
        elif k in ('vst', 'dma'):
            vm.append((set(), it.tag))
            if it.wide:
                for r in it.rd:
                    if r[0] in 'va':
                        last_store_data[r] = p
        elif k == 'smem':
            pass
    if verbose:
        print('finalize: %d lines, nop states %d, waits %d' % (len(out), stats['nop'], stats['wait']))
    return out


def kernel_text(name, lines, vgpr, agpr, sgpr=96):
    acc = (vgpr + 3) // 4 * 4
    nfv = acc + agpr if agpr else vgpr
    body = '\n'.join(lines)
    code = '.globl %s\n.p2align 8\n.type %s,@function\n%s:\n%s\n' % (name, name, name, body)
    kd = ('.amdhsa_kernel %s\n  .amdhsa_next_free_vgpr %d\n  .amdhsa_next_free_sgpr %d\n  .amdhsa_accum_offset %d\n'
          '  .amdhsa_group_segment_fixed_size 0\n  .amdhsa_kernarg_size 112\n  .amdhsa_user_sgpr_count 2\n'
          '  .amdhsa_user_sgpr_kernarg_segment_ptr 1\n  .amdhsa_system_sgpr_workgroup_id_x 1\n'
          '  .amdhsa_float_denorm_mode_32 3\n'
          '.end_amdhsa_kernel\n') % (name, nfv, sgpr, acc)
    return code, kd


class Sched:
    def __init__(self):
        self.m = []
        self.gaps = []
        self.q = []
        self.rate = 1

    def mf(self, lst):
        g0 = len(self.m)
        self.m.extend(lst)
        self.gaps.extend([[] for _ in lst])
        return g0

    def place(self, items, g0, g1):
        g1 = min(g1, len(self.m))
        assert g1 > g0
        m = len(items)
        span = g1 - g0
        for j, it in enumerate(items):
            self.gaps[g0 + (j * span) // max(m, 1)].append(it)

    def queue(self, items, earliest=0):
        for it in items:
            self.q.append((it, earliest))

    def emit(self, p):
        qi = 0
        for g in range(len(self.m)):
            p.add(self.m[g])
            p.add(self.gaps[g])
            budget = self.rate
            while qi < len(self.q) and self.q[qi][1] <= g and budget > 0:
                it = self.q[qi][0]
                p.add(it)
                qi += 1
                if isinstance(it, Inst) and it.kind in ('vld', 'vst', 'dma'):
                    budget -= 1
        assert qi == len(self.q), 'queue not drained: %d left' % (len(self.q) - qi)
```

```python
import sys
from asmfw import *

KA = dict(x=0, k=8, v=16, wq=24, wo=32, bx=40, wg=48, wu=56, wd=64, c=72, wmod=80, out=88, dbg=96, ws=104)
WS_MOD = 0
WS_H = 1 << 20
WS_O = 4 << 20
WS_X1 = 20 << 20
WS_ST = 23 << 20
WS_ACT = 24 << 20
WS_Z = 32 << 20
WS_WOP = 36 << 20
WS_WDP = 42 << 20
WS_UP = 46 << 20
SZ_WOP = 8 * 128 * 5120
SZ_WDP = 8 * 54 * 5120
SZ_UP = 4 * 2 * 3456 * 4
HUGE = 0x40000000
SZ_H = 64 * 40 * 1024
SZ_O = 128 * 128 * 1024
SZ_ST = 2048 * 8 * 8
SZ_ACT = 128 * 54 * 1024

LOG2E = 1.4426950408889634


def f32hex(x):
    import struct
    return '0x%08x' % struct.unpack('<I', struct.pack('<f', x))[0]


def srd(p, d, base_lo, size, off=0):
    if off:
        p('s_add_u32 s%d, s%d, 0x%x' % (d, base_lo, off))
        p('s_addc_u32 s%d, s%d, 0' % (d + 1, base_lo + 1))
    else:
        p('s_mov_b32 s%d, s%d' % (d, base_lo))
        p('s_mov_b32 s%d, s%d' % (d + 1, base_lo + 1))
    p('s_mov_b32 s%d, 0x%x' % (d + 2, size))
    p('s_mov_b32 s%d, 0x20000' % (d + 3))


import os
PROF = int(os.environ.get('PROF', '0'))
WS_PROF = 200 << 20


class Stamps:
    def __init__(self, kidx):
        self.n = 0
        self.kidx = kidx

    def st(self):
        if not PROF:
            return []
        self.n += 1
        return [I('s_memtime s[%d:%d]' % (62 + 2 * self.n, 63 + 2 * self.n))]

    def begin(self, p):
        if PROF:
            p('s_memrealtime s[60:61]')
            p('s_load_dwordx2 s[58:59], s[0:1], %d' % KA['ws'])
            p.add(self.st())

    def end(self, p):
        if not PROF:
            return
        p.add(self.st())
        p('s_memrealtime s[62:63]')
        p('s_waitcnt lgkmcnt(0)')
        p('s_mov_b64 exec, -1')
        srd(p, 88, 58, 1 << 20, WS_PROF + self.kidx * 65536)
        p('v_lshrrev_b32 v1, 6, v0')
        p('s_lshl_b32 s3, s2, 2')
        p('v_add_u32 v1, s3, v1')
        p('v_lshlrev_b32 v1, 6, v1')
        p('v_mov_b32 v2, s60')
        p('buffer_store_dword v2, v1, s[88:91], 0 offen')
        p('v_mov_b32 v2, s62')
        p('buffer_store_dword v2, v1, s[88:91], 0 offen offset:4')
        for i in range(self.n):
            p('v_mov_b32 v2, s%d' % (64 + 2 * i))
            p('buffer_store_dword v2, v1, s[88:91], 0 offen offset:%d' % (8 + 4 * i))


def vr(b, n):
    return 'v[%d:%d]' % (b, b + n - 1)


def ar(b, n):
    return 'a[%d:%d]' % (b, b + n - 1)


def bf16_round(p, dst, src):
    p('v_cvt_pk_bf16_f32 v%d, v%d, v%d' % (dst, src, src))
    p('v_and_b32 v%d, 0xffff0000, v%d' % (dst, dst))


def half_wave_sum(p, v, t):
    for mod in ('quad_perm:[1,0,3,2]', 'quad_perm:[2,3,0,1]', 'row_ror:4', 'row_ror:8'):
        p('v_add_f32_dpp v%d, v%d, v%d %s row_mask:0xf bank_mask:0xf' % (v, v, v, mod))
    p('v_mov_b32 v%d, v%d' % (t, v))
    p('v_permlane16_swap_b32 v%d, v%d' % (t, v))
    p('v_add_f32 v%d, v%d, v%d' % (v, v, t))


def gen_pre():
    p = Prog()
    p('''
    s_cmp_ge_u32 s2, 256
    s_cbranch_scc1 L_pre_end
    ''')
    ST = Stamps(0)
    ST.begin(p)
    p('''
    s_load_dwordx4 s[4:7], s[0:1], %d
    s_load_dwordx4 s[8:11], s[0:1], %d
    s_load_dwordx2 s[32:33], s[0:1], %d
    s_load_dwordx2 s[34:35], s[0:1], %d
    v_lshrrev_b32 v1, 6, v0
    v_and_b32 v2, 63, v0
    v_readfirstlane_b32 s28, v1
    s_and_b32 s3, s2, 7
    s_lshr_b32 s29, s2, 3
    s_and_b32 s30, s29, 3
    s_lshr_b32 s31, s29, 2
    s_lshl_b32 s31, s31, 3
    s_add_u32 s31, s31, s3
    s_lshl_b32 s36, s31, 2
    s_add_u32 s36, s36, s30
    s_lshl_b32 s30, s36, 5
    s_cmp_ge_u32 s31, 60
    s_cselect_b32 s37, 0x%x, 0
    s_waitcnt lgkmcnt(0)
    ''' % (KA['c'], KA['dbg'], KA['x'], KA['wq'], HUGE))
    srd(p, 12, 4, 1280)
    srd(p, 16, 6, 640 * 7680)
    srd(p, 20, 10, 3840 * 4, WS_MOD)
    srd(p, 24, 8, 256)
    srd(p, 40, 32, 2048 * 1280)
    srd(p, 44, 10, SZ_H, WS_H)
    srd(p, 48, 34, 640 * 8192)
    p('''
    s_cmp_eq_u32 s28, 4
    s_cbranch_scc0 L_pre_work
    ''')
    p('''
    s_mul_i32 s29, s29, %d
    s_lshr_b32 s3, s3, 1
    s_lshl_b32 s3, s3, 11
    s_add_u32 s29, s29, s3
    v_lshrrev_b32 v3, 5, v2
    v_lshlrev_b32 v3, 13, v3
    v_and_b32 v4, 31, v2
    v_lshl_add_u32 v3, v4, 6, v3
    s_barrier
    ''' % (20 * 8192))
    for m in range(10):
        p('buffer_load_dword v%d, v3, s[48:51], s29 offen' % (8 + m))
        p('s_add_u32 s29, s29, 16384')
    p('s_endpgm')
    p('L_pre_work:')
    p.reset()
    p('''
    v_lshrrev_b32 v3, 1, v2
    v_mul_u32_u24 v4, 160, v1
    v_add_u32 v3, v3, v4
    v_lshlrev_b32 v5, 1, v3
    v_mul_u32_u24 v4, 7680, v3
    v_and_b32 v6, 1, v2
    v_lshlrev_b32 v6, 4, v6
    v_add3_u32 v4, v4, v6, s30
    v_add_u32 v4, s37, v4
    ''')
    for m in range(5):
        p('buffer_load_ushort v%d, v5, s[12:15], 0 offen offset:%d' % (8 + m, 64 * m))
    for m in range(5):
        p('s_mov_b32 s38, %d' % (m * 32 * 7680))
        p('buffer_load_dwordx4 %s, v4, s[16:19], s38 offen' % vr(16 + 4 * m, 4))
    p('''
    v_lshrrev_b32 v60, 5, v0
    s_lshl_b32 s3, s2, 3
    v_add_u32 v60, s3, v60
    v_and_b32 v61, 31, v0
    v_mul_u32_u24 v62, 1280, v60
    v_lshl_add_u32 v62, v61, 3, v62
    v_lshlrev_b32 v63, 4, v61
    ''')
    for m in range(5):
        p('buffer_load_dwordx2 %s, v62, s[40:43], 0 offen offset:%d' % (vr(64 + 2 * m, 2), 256 * m))
    for m in range(5):
        c = 8 + m
        p('v_lshlrev_b32 v%d, 16, v%d' % (c, c))
        p('v_mul_f32 v40, %s, v%d' % (f32hex(-LOG2E), c))
        p('v_exp_f32 v40, v40')
        p('v_add_f32 v40, 1.0, v40')
        p('v_rcp_f32 v40, v40')
        p('v_mul_f32 v%d, v%d, v40' % (c, c))
        bf16_round(p, c, c)
    for m in range(5):
        for j in range(4):
            src = 16 + 4 * m + j
            p('v_lshlrev_b32 v40, 16, v%d' % src)
            p('v_and_b32 v41, 0xffff0000, v%d' % src)
            if m == 0:
                p('v_mul_f32 v%d, v40, v8' % (48 + 2 * j))
                p('v_mul_f32 v%d, v41, v8' % (49 + 2 * j))
            else:
                p('v_fmac_f32 v%d, v40, v%d' % (48 + 2 * j, 8 + m))
                p('v_fmac_f32 v%d, v41, v%d' % (49 + 2 * j, 8 + m))
    for mod in ('quad_perm:[2,3,0,1]', 'row_ror:4', 'row_ror:8'):
        for e in range(8):
            p('v_add_f32_dpp v%d, v%d, v%d %s row_mask:0xf bank_mask:0xf' % (48 + e, 48 + e, 48 + e, mod))
    p('''
    v_lshrrev_b32 v7, 4, v0
    v_lshlrev_b32 v7, 6, v7
    v_lshl_add_u32 v7, v6, 1, v7
    v_and_b32 v40, 14, v0
    v_cmp_eq_u32 vcc, 0, v40
    s_and_saveexec_b64 s[52:53], vcc
    ds_write_b128 v7, v[48:51]
    ds_write_b128 v7, v[52:55] offset:16
    s_mov_b64 exec, s[52:53]
    ''')
    p.wait_lgkm0()
    p('s_barrier')
    p.add(ST.st())
    p('''
    s_cmp_lg_u32 s28, 0
    s_cbranch_scc1 L_pre_ln
    v_and_b32 v40, 15, v0
    v_lshlrev_b32 v40, 2, v40
    ''')
    for g in range(16):
        p('ds_read_b32 v%d, v40 offset:%d' % (16 + g, 64 * g))
    for g in range(1, 16):
        p('v_add_f32 v16, v16, v%d' % (16 + g))
    bf16_round(p, 16, 16)
    p('''
    s_lshl_b32 s30, s30, 1
    v_add_u32 v40, s30, v40
    v_add_u32 v40, s37, v40
    v_cmp_gt_u32 vcc, 16, v0
    s_and_saveexec_b64 s[52:53], vcc
    buffer_store_dword v16, v40, s[20:23], 0 offen sc1
    s_waitcnt vmcnt(0)
    s_mov_b64 exec, 1
    v_mov_b32 v41, 1
    s_cmp_lt_u32 s31, 20
    s_cselect_b32 s38, 0, 0x%x
    v_mov_b32 v40, s38
    v_mov_b32 v42, 1
    buffer_atomic_add v41, v40, s[24:27], 0 offen sc0
    s_waitcnt vmcnt(0)
    v_cmp_eq_u32 vcc, 79, v41
    v_mov_b32 v43, 0x40000000
    v_cndmask_b32 v40, v43, v40, vcc
    buffer_store_dword v42, v40, s[24:27], 0 offen offset:128 sc1
    s_mov_b64 exec, s[52:53]
    L_pre_ln:
    ''' % HUGE)
    p('s_waitcnt vmcnt(0)')
    X = 80
    for m in range(5):
        for j in range(2):
            p('v_lshlrev_b32 v%d, 16, v%d' % (X + 4 * m + 2 * j, 64 + 2 * m + j))
            p('v_and_b32 v%d, 0xffff0000, v%d' % (X + 1 + 4 * m + 2 * j, 64 + 2 * m + j))
    p('v_add_f32 v5, v%d, v%d' % (X, X + 1))
    for e in range(2, 20):
        p('v_add_f32 v5, v5, v%d' % (X + e))
    half_wave_sum(p, 5, 6)
    p('v_mul_f32 v5, %s, v5' % f32hex(1.0 / 640))
    p('v_sub_f32 v44, v%d, v5' % X)
    p('v_mul_f32 v7, v44, v44')
    for e in range(1, 20):
        p('v_sub_f32 v44, v%d, v5' % (X + e))
        p('v_fmac_f32 v7, v44, v44')
    half_wave_sum(p, 7, 6)
    p('v_mul_f32 v7, %s, v7' % f32hex(1.0 / 640))
    bf16_round(p, 5, 5)
    bf16_round(p, 7, 7)
    p('v_add_f32 v7, %s, v7' % f32hex(1e-5))
    bf16_round(p, 7, 7)
    p('v_sqrt_f32 v7, v7')
    bf16_round(p, 7, 7)
    p('v_rcp_f32 v7, v7')
    p('''
    v_lshrrev_b32 v44, 5, v60
    v_mul_u32_u24 v44, 40960, v44
    v_lshrrev_b32 v45, 2, v61
    v_lshl_add_u32 v44, v45, 10, v44
    v_bfe_u32 v45, v61, 1, 1
    v_lshl_add_u32 v44, v45, 9, v44
    v_and_b32 v45, 31, v60
    v_lshl_add_u32 v44, v45, 4, v44
    v_and_b32 v45, 1, v61
    v_lshl_add_u32 v44, v45, 3, v44
    ''')
    for e in range(20):
        x = X + e
        p('v_sub_f32 v%d, v%d, v5' % (x, x))
        bf16_round(p, x, x)
        p('v_mul_f32 v%d, v%d, v7' % (x, x))
        bf16_round(p, x, x)
    p('''
    v_mov_b32 v45, 0
    s_mov_b32 s38, 0
    s_mov_b32 s39, 2048
    L_pre_poll:
    buffer_load_dword v46, v45, s[24:27], 0 offen offset:128 sc1
    s_add_u32 s38, s38, 1
    s_waitcnt vmcnt(0)
    v_cmp_eq_u32 vcc, 0, v46
    s_cbranch_vccz L_pre_go
    s_sleep 2
    s_cmp_lt_u32 s38, 0x40000
    s_cbranch_scc1 L_pre_poll
    L_pre_go:
    ''')
    p.reset()
    p.add(ST.st())
    for m in range(5):
        p('buffer_load_dwordx4 %s, v63, s[20:23], 0 offen offset:%d sc1' % (vr(8 + 4 * m, 4), 512 * m))
        p('buffer_load_dwordx4 %s, v63, s[20:23], s39 offen offset:%d sc1' % (vr(100 + 4 * m, 4), 512 + 512 * m))
    for m in range(5):
        for e in range(4):
            x = X + 4 * m + e
            c = 100 + 4 * m + e
            p('v_add_f32 v%d, 1.0, v%d' % (c, c))
            bf16_round(p, c, c)
            p('v_mul_f32 v%d, v%d, v%d' % (x, x, c))
            bf16_round(p, x, x)
            p('v_add_f32 v%d, v%d, v%d' % (x, x, 8 + 4 * m + e))
        p('v_cvt_pk_bf16_f32 v%d, v%d, v%d' % (48 + 2 * m, X + 4 * m, X + 1 + 4 * m))
        p('v_cvt_pk_bf16_f32 v%d, v%d, v%d' % (49 + 2 * m, X + 2 + 4 * m, X + 3 + 4 * m))
        p('s_mov_b32 s38, %d' % (8192 * m))
        p('buffer_store_dwordx2 %s, v44, s[44:47], s38 offen' % vr(48 + 2 * m, 2))
    ST.end(p)
    p('''
    L_pre_end:
    s_endpgm
    ''')
    return kernel_text('pre_kernel', finalize(p), 120, 0)


MF32 = 'v_mfma_f32_32x32x16_bf16'
MF16 = 'v_mfma_f32_16x16x32_bf16'


def pack_voffsets(p, dst, lane, t0):
    a, b, c, d, e = t0, t0 + 1, t0 + 2, t0 + 3, t0 + 4
    for m in range(5):
        p('v_add_u32 v%d, %d, v%d' % (a, 64 * m, lane))
        p('v_mul_u32_u24 v%d, 6554, v%d' % (b, a))
        p('v_lshrrev_b32 v%d, 16, v%d' % (b, b))
        p('v_mul_u32_u24 v%d, 10, v%d' % (c, b))
        p('v_sub_u32 v%d, v%d, v%d' % (c, a, c))
        p('v_and_b32 v%d, 0x13, v%d' % (d, b))
        p('v_bfe_u32 v%d, v%d, 2, 1' % (e, b))
        p('v_lshl_add_u32 v%d, v%d, 3, v%d' % (d, e, d))
        p('v_bfe_u32 v%d, v%d, 3, 1' % (e, b))
        p('v_lshl_add_u32 v%d, v%d, 2, v%d' % (d, e, d))
        p('v_mul_u32_u24 v%d, 1280, v%d' % (d, d))
        p('v_lshl_add_u32 v%d, v%d, 4, v%d' % (d, c, d))
        p('v_subrev_u32 v%d, %d, v%d' % (dst + m, 1024 * (m % 4), d))


SM_THR = 2.0 ** 64
ABL = int(os.environ.get('ABL', '0'))


def gen_attn():
    p = Prog()
    MF = MF32
    QF = lambda qt, t: 16 + (qt * 8 + t) * 4
    QA = lambda qt, dt: 80 + (qt * 4 + dt) * 16
    S = lambda qt: 80 + qt * 16
    P = lambda qt, kk: 112 + (qt * 2 + kk) * 4
    NM = lambda qt: 144 + 16 * qt
    vPK = 8
    vPT = 13
    vPS = 14
    vPF = 15
    vKA = 208
    vTR = 216
    vDK = 228
    vDV = 232
    vDW = 233
    vH = 237
    vO = 239
    vLT = 240
    vLS = 242
    vT = 244
    HF = lambda f: (f % 48) * 4
    AW = lambda ks, dt: 192 + ((ks % 4) * 4 + dt) * 4
    OA = lambda qt, dt: (qt * 4 + dt) * 16
    KFR = lambda t: 128 + 4 * t
    VFR = lambda dt, kk: 160 + (dt * 2 + kk) * 4
    PKF = lambda j: 192 + 4 * j
    sW, sM0, sHD, sT, sKV, sWQ = 28, 29, 30, 31, 32, 33

    p('''
    s_cmp_ge_u32 s2, 256
    s_cbranch_scc1 L_attn_end
    ''')
    ST = Stamps(2)
    ST.begin(p)
    p('''
    s_load_dwordx4 s[36:39], s[0:1], %d
    s_load_dwordx4 s[40:43], s[0:1], %d
    s_load_dwordx2 s[4:5], s[0:1], %d
    s_load_dwordx4 s[84:87], s[0:1], %d
    s_load_dwordx2 s[6:7], s[0:1], %d
    v_lshrrev_b32 v1, 6, v0
    v_and_b32 v2, 63, v0
    v_readfirstlane_b32 s%d, v1
    s_and_b32 s3, s2, 7
    s_lshr_b32 s44, s2, 3
    s_and_b32 s45, s3, 1
    s_lshl_b32 s45, s45, 2
    s_and_b32 s46, s44, 3
    s_add_u32 s45, s45, s46
    s_lshr_b32 s3, s3, 1
    s_lshl_b32 s3, s3, 3
    s_lshr_b32 s44, s44, 2
    s_add_u32 s%d, s3, s44
    s_lshl_b32 s%d, s%d, 12
    ''' % (KA['k'], KA['wq'], KA['ws'], KA['wg'], KA['wd'], sW, sHD, sM0, sW))
    p('''
    v_lshrrev_b32 v3, 4, v2
    v_and_b32 v4, 15, v2
    v_lshrrev_b32 v5, 5, v2
    v_bfe_u32 v6, v2, 2, 2
    v_and_b32 v7, 3, v2
    v_lshlrev_b32 v8, 2, v3
    v_xor_b32 v8, v8, v4
    v_lshlrev_b32 v8, 4, v8
    v_lshl_add_u32 v9, v1, 4, v3
    v_lshl_add_u32 v%d, v9, 13, v8
    ''' % vDW)
    for j in range(1, 4):
        p('v_add_u32 v%d, %d, v%d' % (vDW + j, j * (32768 - 1024), vDW))
    p('''
    s_lshl_b32 s46, s45, 3
    s_lshl_b32 s47, s%d, 1
    s_add_u32 s46, s46, s47
    s_mul_i32 s46, s46, 40960
    v_lshlrev_b32 v%d, 4, v2
    v_add_u32 v%d, s46, v%d
    v_add_u32 v%d, 40960, v%d
    s_lshl_b32 s%d, s%d, 8
    s_waitcnt lgkmcnt(0)
    ''' % (sW, vPS, vH, vPS, vH + 1, vH, sWQ, sHD))
    srd(p, 8, 40, 640 * 8192)
    srd(p, 20, 4, SZ_H, WS_H)

    def dma_wq(c):
        L = [I('s_add_u32 m0, s%d, %d' % (sM0, c * 16384)),
             I('s_add_u32 s%d, s%d, %d' % (sT, sWQ, 0 if ABL & 128 else c * 64 * 8192))]
        for j in range(1 if (ABL & 512 and c >= 2) else 4):
            L.append(I('buffer_load_dwordx4 v%d, s[8:11], s%d offen offset:%d lds' % (vDW + j, sT, 1024 * j), tag='wq%d' % c))
        return L

    def dma_k(c):
        L = [I('s_add_u32 m0, s%d, %d' % (sM0, (c % 4) * 16384)),
             I('s_add_u32 s%d, s%d, %d' % (sT, sKV, c * 16384))]
        for j in range(4):
            L.append(I('buffer_load_dwordx4 v%d, s[12:15], s%d offen offset:%d lds' % (vDK + j, sT, 1024 * j), tag='k%d' % c))
        return L

    def dma_v(c):
        L = [I('s_add_u32 m0, s%d, %d' % (sM0, (4 + c % 4) * 16384)),
             I('s_add_u32 s%d, s%d, %d' % (sT, sKV, c * 16384))]
        for j in range(4):
            L.append(I('buffer_load_dwordx4 v%d, s[16:19], s%d offen offset:%d lds' % (vDV, sT, 1024 * j), tag='v%d' % c))
        return L

    def ld_h(c):
        L = [I('s_mov_b32 s34, %d' % (0 if ABL & 64 else c * 4096))]
        if ABL & 256 and c >= 2:
            return L
        for ks in range(4):
            for qt in range(2):
                f = (c * 4 + ks) * 2 + qt
                L.append(I('buffer_load_dwordx4 %s, v%d, s[20:23], s34 offen offset:%d' % (ar(HF(f), 4), vH + qt, 1024 * ks)))
        return L

    NPRE = int(os.environ.get('NPRE', '2'))
    for c in range(NPRE):
        p.add(dma_wq(c))
        p.add(ld_h(c))
    srd(p, 12, 36, 32 * 2048 * 256)
    srd(p, 16, 38, 32 * 2048 * 256)
    srd(p, 24, 4, SZ_O, WS_O)
    srd(p, 48, 42, 4096 * 1280)
    srd(p, 52, 6, 1728 * 1280)
    srd(p, 72, 4, SZ_WOP, WS_WOP)
    srd(p, 76, 4, SZ_WDP, WS_WDP)
    srd(p, 80, 84, 640 * 3456)
    srd(p, 84, 86, 640 * 3456)
    p('''
    v_lshl_add_u32 v8, v5, 3, v6
    v_lshlrev_b32 v8, 8, v8
    v_and_b32 v9, 1, v3
    v_lshl_add_u32 v8, v9, 5, v8
    v_and_b32 v9, 1, v7
    v_lshl_add_u32 v8, v9, 4, v8
    v_lshrrev_b32 v9, 1, v7
    v_lshl_add_u32 v8, v9, 3, v8
    ''')
    for dt in range(4):
        p('v_xor_b32 v9, %d, v6' % dt)
        p('v_lshl_add_u32 v%d, v9, 6, v8' % (vTR + dt))
        p('v_add_u32 v%d, 0x10000, v%d' % (vTR + 4 + dt, vTR + dt))
        p('v_add_u32 v%d, 0x20000, v%d' % (vTR + 8 + dt, vTR + dt))
    p('''
    v_and_b32 v8, 0x13, v2
    v_bfe_u32 v9, v2, 2, 1
    v_lshl_add_u32 v8, v9, 3, v8
    v_bfe_u32 v9, v2, 3, 1
    v_lshl_add_u32 v8, v9, 2, v8
    v_and_b32 v9, 15, v8
    v_xor_b32 v9, v9, v5
    v_lshlrev_b32 v8, 8, v8
    ''')
    for t in range(8):
        p('v_xor_b32 v10, %d, v9' % (2 * t))
        p('v_lshl_add_u32 v%d, v10, 4, v8' % (vKA + t))
    p('''
    v_lshlrev_b32 v8, 8, v3
    v_lshl_add_u32 v8, v1, 12, v8
    v_xor_b32 v9, v4, v3
    ''')
    for j in range(4):
        p('v_xor_b32 v10, %d, v9' % (4 * j))
        p('v_lshl_add_u32 v%d, v10, 4, v8' % (vDK + j))
    p('''
    v_lshlrev_b32 v10, 2, v3
    v_xor_b32 v10, v10, v4
    v_lshl_add_u32 v%d, v10, 4, v8
    s_lshl_b32 s%d, s%d, 19
    s_add_u32 s%d, s%d, %d
    ''' % (vDV, sKV, sHD, sKV, sKV, 1536 * 256))
    p('''
    s_lshl_b32 s46, s45, 4
    s_lshl_b32 s47, s%d, 2
    s_add_u32 s46, s46, s47
    s_lshl_b32 s46, s46, 7
    s_lshl_b32 s47, s%d, 2
    s_add_u32 s46, s46, s47
    s_lshl_b32 s46, s46, 10
    v_and_b32 v8, 1, v3
    v_lshlrev_b32 v8, 17, v8
    v_lshl_add_u32 v8, v5, 8, v8
    v_lshl_add_u32 v8, v4, 4, v8
    v_add_u32 v%d, s46, v8
    s_mov_b32 s35, 0x40000
    s_mov_b32 s44, %s
    ''' % (sW, sHD, vO, f32hex(SM_THR)))
    p('''
    v_bfe_u32 v8, v2, 4, 1
    v_lshl_add_u32 v8, v8, 2, v6
    v_lshl_add_u32 v8, v5, 4, v8
    v_mul_u32_u24 v8, 160, v8
    v_lshl_add_u32 v8, v7, 3, v8
    s_lshl_b32 s56, s%d, 13
    s_add_u32 s56, s56, 0x20000
    v_add_u32 v%d, s56, v8
    s_lshr_b32 s46, s2, 1
    s_and_b32 s47, s2, 1
    s_lshl_b32 s47, s47, 2
    s_add_u32 s47, s47, s%d
    s_mul_i32 s57, s46, 40960
    s_mul_i32 s3, s47, 160
    s_add_u32 s57, s57, s3
    s_lshl_b32 s3, s47, 7
    s_add_u32 s3, s3, s46
    s_mul_i32 s4, s3, 5120
    s_mul_i32 s3, s47, 54
    s_add_u32 s3, s3, s46
    s_mul_i32 s5, s3, 5120
    s_cmp_ge_u32 s46, 54
    s_cselect_b32 s3, 0x%x, 0
    s_add_u32 s5, s5, s3
    s_add_u32 s6, s4, 4096
    s_add_u32 s7, s5, 4096
    s_lshl_b32 s3, s2, 2
    s_add_u32 s3, s3, s%d
    s_mul_i32 s3, s3, 2176
    v_lshlrev_b32 v%d, 6, v2
    v_add_u32 v%d, s3, v%d
    ''' % (sW, vPT, sW, HUGE, sW, vPF, vPF, vPF))
    pack_voffsets(p, vPK, 2, vT)

    def pack_dma(which):
        srdb = 48 if which == 'wo' else 52
        L = [I('s_mov_b32 m0, s56')]
        for m in range(5):
            if m == 4:
                L.append(I('s_add_u32 m0, s56, 4096'))
            L.append(I('buffer_load_dwordx4 v%d, s[%d:%d], s57 offen offset:%d lds' % (vPK + m, srdb, srdb + 3, 1024 * (m % 4)), tag='p' + which))
        return L

    def pack_rd(which):
        L = [WVM('p' + which)]
        for j in range(5):
            for a in range(2):
                L.append(I('ds_read_b64_tr_b16 %s, v%d offset:%d' % (ar(PKF(j) + 2 * a, 2), vPT, a * 1280 + 32 * j)))
        return L

    def pack_st(which):
        srdb, so = (72, 4) if which == 'wo' else (76, 5)
        return [I('buffer_store_dwordx4 %s, v%d, s[%d:%d], s%d offen offset:%d' % (
            ar(PKF(j), 4), vPS, srdb, srdb + 3, so + (2 if j == 4 else 0), 1024 * (j % 4))) for j in range(5)]

    def rd_w(c, ks):
        L = []
        g, so = c // 4, (c % 4) * 16384
        for dt in range(4):
            for a in range(2):
                L.append(I('ds_read_b64_tr_b16 %s, v%d offset:%d' % (ar(AW(ks, dt) + 2 * a, 2), vTR + 4 * g + dt, so + (16 * ks + 4 * a) * 256)))
        return L

    def mf_q(c, ks, qts=(0, 1)):
        L = []
        kk = c * 4 + ks
        for dt in range(4):
            for qt in qts:
                src = vr(QA(qt, dt), 16) if kk > 0 else '0'
                L.append(I('%s %s, %s, %s, %s' % (MF, vr(QA(qt, dt), 16), ar(AW(ks, dt), 4), ar(HF(kk * 2 + qt), 4), src)))
        return L

    def rd_k(s, t):
        c = s // 2
        return I('ds_read_b128 %s, v%d offset:%d' % (ar(KFR(t), 4), vKA + t, (c % 4) * 16384 + (s % 2) * 8192))

    def rd_v(s, dt, kk):
        c = s // 2
        return [I('ds_read_b64_tr_b16 %s, v%d offset:%d' % (ar(VFR(dt, kk) + 2 * a, 2), vTR + 4 + dt,
                                                            (c % 4) * 16384 + (s % 2) * 8192 + (16 * kk + 4 * a) * 256)) for a in range(2)]

    qscale = f32hex(128 ** -0.5 * LOG2E)

    def cvt_q(qt):
        L = []
        for dt in range(4):
            for t2 in range(2):
                b = QA(qt, dt) + 8 * t2
                for e in range(8):
                    L.append(I('v_mul_f32 v%d, %s, v%d' % (b + e, qscale, b + e)))
                for j in range(4):
                    L.append(I('v_cvt_pk_bf16_f32 v%d, v%d, v%d' % (QF(qt, 2 * dt + t2) + j, b + 2 * j, b + 2 * j + 1)))
        return L

    p.wait_vm_tag('wq0')
    p('s_barrier')
    p.add(ST.st())
    p.add(rd_w(0, 0))
    p.add(rd_w(0, 1))
    sc = Sched()
    for c in range(NPRE, 10):
        sc.queue(dma_wq(c), 0)
        sc.queue(ld_h(c), max(0, 32 * (c - 5)))
    for c in range(4):
        sc.queue(dma_k(c)[:3 if ABL & 32 else 6], 32 * (c + 1) + 16)
    for c in range(4):
        sc.queue(dma_v(c)[:3 if ABL & 32 else 6], 32 * (c + 5) + 16)
    for c in range(10):
        if c < 9:
            g = sc.mf(mf_q(c, 0) + mf_q(c, 1) + mf_q(c, 2) + mf_q(c, 3))
            sc.place(rd_w(c, 2), g, g + 8)
            sc.place(rd_w(c, 3), g + 8, g + 16)
            sc.place([WVM('wq%d' % (c + 1)), I('s_barrier')], g + 15, g + 16)
            sc.place(rd_w(c + 1, 0), g + 16, g + 24)
            sc.place(rd_w(c + 1, 1), g + 24, g + 32)
        else:
            g = sc.mf(mf_q(c, 0, (0,)) + mf_q(c, 1, (0,)) + mf_q(c, 2, (0,)) + mf_q(c, 3, (0,)))
            sc.place(rd_w(c, 2), g, g + 4)
            sc.place(rd_w(c, 3), g + 4, g + 8)
            sc.place([WVM('k0'), WVM('v0'), I('s_barrier')], g + 10, g + 11)
            g = sc.mf(mf_q(c, 0, (1,)) + mf_q(c, 1, (1,)) + mf_q(c, 2, (1,)) + mf_q(c, 3, (1,)))
            sc.place(cvt_q(0), g + 1, g + 16)
            sc.place([rd_k(0, t) for t in range(8)], g, g + 16)
            sc.place(ST.st(), g + 15, g + 16) if PROF else None

    def mf_qk(h):
        s, qt = h // 2, h % 2
        L = []
        for t in range(8):
            src = vr(S(qt), 16) if t > 0 else ('0' if s == 0 else vr(NM(qt), 16))
            L.append(I('%s %s, %s, %s, %s' % (MF, vr(S(qt), 16), ar(KFR(t), 4), vr(QF(qt, t), 4), src)))
        return L

    def mf_pv(h):
        s, qt = h // 2, h % 2
        L = []
        for dt in range(4):
            for kk in range(2):
                src = ar(OA(qt, dt), 16) if (s > 0 or kk > 0) else '0'
                L.append(I('%s %s, %s, %s, %s' % (MF, ar(OA(qt, dt), 16), ar(VFR(dt, kk), 4), vr(P(qt, kk), 4), src)))
        return L

    def sm(h, sub=False):
        s, qt = h // 2, h % 2
        b = S(qt)
        ls = vLS + qt
        T = lambda e: vT + (e % 8)
        G = []
        for e in range(18):
            g = []
            if e < 16:
                if sub:
                    g.append(I('v_add_f32 v%d, v%d, v%d' % (b + e, b + e, NM(qt))))
                g.append(I('v_exp_f32 v%d, v%d' % (T(e), b + e)))
            d = e - 2
            if d == 1:
                g.append(I('v_add_f32 v%d, v%d, v%d' % (ls, T(0), T(1))))
            elif d >= 2:
                g.append(I('v_add_f32 v%d, v%d, v%d' % (ls, ls, T(d))))
            if d >= 1 and d % 2 == 1:
                g.append(I('v_cvt_pk_bf16_f32 v%d, v%d, v%d' % (P(qt, d // 8) + (d % 8) // 2, T(d - 1), T(d))))
            G.append(g)
        G[15] = G[15] + G[16] + G[17]
        return G[:16]

    def rowmax(qt, dst, tmp):
        b = S(qt)
        L = [I('v_max3_f32 v%d, v%d, v%d, v%d' % (dst, b, b + 1, b + 2))]
        for e in range(3, 15, 2):
            L.append(I('v_max3_f32 v%d, v%d, v%d, v%d' % (dst, dst, b + e, b + e + 1)))
        L.append(I('v_max_f32 v%d, v%d, v%d' % (dst, dst, b + 15)))
        L.append(I('v_mov_b32 v%d, v%d' % (tmp, dst)))
        L.append(I('v_permlane32_swap_b32 v%d, v%d' % (tmp, dst)))
        L.append(I('v_max_f32 v%d, v%d, v%d' % (dst, dst, tmp)))
        return L

    def first_max(qt):
        L = rowmax(qt, vT + 8, vT + 9)
        for e in range(16):
            L.append(I('v_sub_f32 v%d, 0, v%d' % (NM(qt) + e, vT + 8)))
        return L

    def check(h):
        qt = h % 2
        L = []
        if h >= 2:
            L.append(I('v_cmp_nge_f32 vcc, s44, v%d' % (vLS + qt)))
            if not ABL & 1:
                L.append([I('s_cbranch_vccnz L_slow_%d' % h), I('L_back_%d:' % h)])
            else:
                L.append(I('L_back_%d:' % h))
            L.append(I('v_add_f32 v%d, v%d, v%d' % (vLT + qt, vLT + qt, vLS + qt)))
        else:
            L.append(I('v_mov_b32 v%d, v%d' % (vLT + qt, vLS + qt)))
        return L

    def finalize_q(qt):
        L = [I('v_mov_b32 v%d, v%d' % (vT + 8, vLT + qt)),
             I('v_permlane32_swap_b32 v%d, v%d' % (vT + 8, vLT + qt)),
             I('v_add_f32 v%d, v%d, v%d' % (vT + 8, vT + 8, vLT + qt)),
             I('v_rcp_f32 v%d, v%d' % (vT + 8, vT + 8))]
        n = 0
        for dt in range(4):
            for t2 in range(2):
                tb = 176 + 12 * (n % 2)
                n += 1
                for e in range(8):
                    L.append(I('v_accvgpr_read_b32 v%d, a%d' % (tb + e, OA(qt, dt) + 8 * t2 + e)))
                for e in range(8):
                    L.append(I('v_mul_f32 v%d, v%d, v%d' % (tb + e, tb + e, vT + 8)))
                for j in range(4):
                    L.append(I('v_cvt_pk_bf16_f32 v%d, v%d, v%d' % (tb + 8 + j, tb + 2 * j, tb + 2 * j + 1)))
                L.append(I('buffer_store_dwordx4 %s, v%d, s[24:27], %s offen offset:%d' % (
                    vr(tb + 8, 4), vO, 's35' if qt else '0', dt * 1024 + t2 * 512)))
        return L

    g = sc.mf(mf_qk(0))
    sc.place(cvt_q(1), g, g + 8)
    for n in range(0, 33):
        M = []
        if n + 1 < 32:
            M += mf_qk(n + 1)
        if n - 1 >= 0:
            M += mf_pv(n - 1)
        tot = len(M)
        g = sc.mf(M)
        if 2 <= n < 31:
            V = sm(n)
            V[15] = V[15] + check(n)
        elif n < 32:
            V = []
            if n < 2:
                V += first_max(n)
            for grp in sm(n, sub=(n < 2)):
                V += grp
            V += check(n)
        else:
            V = finalize_q(0)
        if ABL & 2 and 2 <= n < 32:
            V = check(n)
        if n % 2 == 0:
            s = n // 2 + 1
            if s < 16 and s % 2 == 0:
                c = s // 2
                if not ABL & 8:
                    sc.place([WVM('k%d' % c), WVM('v%d' % c), I('s_barrier')], g, g + 1)
                if c + 3 < 8:
                    sc.queue(dma_k(c + 3), g + 1)
                if c >= 2 and c + 2 < 8:
                    sc.queue(dma_v(c + 2), g + 1)
        sc.place(V, g + (1 if n == 0 else 0), g + tot)
        if n % 2 == 0 and n // 2 + 1 < 16 and not ABL & 4:
            sc.place([rd_k(n // 2 + 1, t) for t in range(8)], g + 1, g + min(9, tot))
        RV = lambda s, a: [rd_v(s, dt, kk)[a] for dt in range(4) for kk in range(2)]
        if not (ABL & 4 and n > 1):
            if n == 1:
                sc.place(RV(0, 0) + RV(0, 1), g, g + 8)
            elif n == 30:
                sc.place([x for pr in zip(RV(15, 0), RV(15, 1)) for x in pr], g + 8, g + 16)
            elif n % 2 == 0 and 2 <= n < 30:
                sc.place(RV(n // 2, 0), g + 8, g + 16)
            elif n % 2 == 1 and 3 <= n < 31:
                sc.place(RV(n // 2, 1), g, g + 8)
        if ABL & 16:
            continue
        if n == 3:
            sc.queue(pack_dma('wd'), g)
        if n == 11:
            sc.queue([I('buffer_load_dword v%d, v%d, s[80:83], 0 offen' % (vT + 11, vPF)),
                      I('buffer_load_dword v%d, v%d, s[84:87], 0 offen' % (vT + 11, vPF))], g)
        if n == 15:
            sc.place(pack_rd('wd'), g + 8, g + 16)
        if n == 17:
            sc.queue(pack_st('wd'), g + 8)
        if n == 19:
            sc.queue(pack_dma('wo'), g)
        if n == 27:
            sc.place(pack_rd('wo'), g + 8, g + 16)
        if n == 29:
            sc.queue(pack_st('wo'), g + 8)
    sc.emit(p)
    p.add(ST.st())
    p.add(finalize_q(1))
    ST.end(p)
    p('s_endpgm')
    for h in range(2, 32):
        p('L_slow_%d:' % h)
        p('s_call_b64 s[46:47], L_rescale_%d' % (h % 2))
        p('s_branch L_back_%d' % h)
    for qt in range(2):
        p('L_rescale_%d:' % qt)
        p('s_nop 15')
        p('s_nop 15')
        d, f = vT + 8, vT + 9
        p.add(rowmax(qt, d, f))
        p('v_max_f32 v%d, 0, v%d' % (d, d))
        p('v_sub_f32 v%d, 0, v%d' % (f, d))
        p('v_exp_f32 v%d, v%d' % (f, f))
        for e in range(16):
            p('v_sub_f32 v%d, v%d, v%d' % (S(qt) + e, S(qt) + e, d))
            p('v_sub_f32 v%d, v%d, v%d' % (NM(qt) + e, NM(qt) + e, d))
        p('v_mul_f32 v%d, v%d, v%d' % (vLT + qt, vLT + qt, f))
        for r in range(64):
            a = OA(qt, 0) + r
            p('v_accvgpr_read_b32 v%d, a%d' % (vT + 10, a))
            p('v_mul_f32 v%d, v%d, v%d' % (vT + 10, vT + 10, f))
            p('v_accvgpr_write_b32 a%d, v%d' % (a, vT + 10))
        p.add(sm(qt + 2))
        p('s_nop 3')
        p('s_setpc_b64 s[46:47]')
    p('L_attn_end:')
    p('s_endpgm')
    return kernel_text('attn_kernel', finalize(p, True), 256, 256)


def gen_gemm_n640(name, nkb, steps, w_off, w_size, b_off, b_size, final):
    p = Prog()
    MF = MF16
    D = 6
    NR = D + 1
    ACC = lambda qt, j: (qt * 5 + j) * 4
    BF = lambda i, qt: 64 + ((i % NR) * 4 + qt) * 4
    AF = lambda i, j: 80 + ((i % NR) * 5 + j) * 4
    vA, vA4, vB = 20, 21, 22
    sW, sKB = 28, 30
    E = 'L_%s_end' % name
    p('''
    s_cmp_ge_u32 s2, 256
    s_cbranch_scc1 %s
    ''' % E)
    ST = Stamps(5 if final else 3)
    ST.begin(p)
    p('''
    s_load_dwordx2 s[38:39], s[0:1], %d
    s_load_dwordx2 s[40:41], s[0:1], %d
    s_load_dwordx4 s[84:87], s[0:1], %d
    v_lshrrev_b32 v1, 6, v0
    v_and_b32 v2, 63, v0
    v_readfirstlane_b32 s%d, v1
    s_and_b32 s3, s2, 7
    s_lshr_b32 s4, s2, 3
    s_and_b32 s5, s3, 1
    s_lshl_b32 s5, s5, 1
    s_bfe_u32 s6, s3, 0x10001
    s_add_u32 s5, s5, s6
    s_lshl_b32 s5, s5, 3
    s_lshr_b32 s6, s4, 2
    s_add_u32 s5, s5, s6
    s_lshr_b32 s3, s3, 2
    s_lshl_b32 s3, s3, 2
    s_and_b32 s4, s4, 3
    s_add_u32 s6, s3, s4
    ''' % (KA['ws'], KA['out'] if final else KA['x'], KA['wg'], sW))
    p('s_mul_i32 s%d, s%d, %d' % (sKB, sW, steps))
    ragged = steps * 4 != nkb
    if ragged:
        p('s_cmp_eq_u32 s%d, 3' % sW)
        p('s_cselect_b32 s7, 1, 0')
        p('s_sub_u32 s%d, s%d, s7' % (sKB, sKB))
    p('''
    s_mul_i32 s7, s6, %d
    s_add_u32 s7, s7, s%d
    s_mul_i32 s7, s7, 5120
    v_lshlrev_b32 v3, 4, v2
    v_add_u32 v%d, s7, v3
    v_add_u32 v%d, 4096, v%d
    s_mul_i32 s7, s5, %d
    s_add_u32 s7, s7, s%d
    s_lshl_b32 s7, s7, 10
    v_add_u32 v%d, s7, v3
    s_waitcnt lgkmcnt(0)
    ''' % (nkb, sKB, vA, vA4, vA, 4 * nkb, sKB, vB))
    srd(p, 8, 38, w_size, w_off)
    srd(p, 12, 38, b_size, b_off)
    for qt in range(1, 4):
        p('s_mov_b32 s%d, %d' % (48 + qt, qt * nkb * 1024))
    if ragged:
        p('s_cmp_ge_u32 s%d, 2' % sW)
        p('s_cselect_b32 s52, 0x%x, 0' % HUGE)

    def loads(i):
        L = [I('s_mov_b32 s32, %d' % (i * 5120))]
        lastr = ragged and i == steps - 1
        if lastr:
            L.append(I('s_add_u32 s32, s32, s52'))
        if i % 4 == 0 and i > 0:
            L.append(I('v_add_u32 v%d, 4096, v%d' % (vB, vB)))
        if lastr:
            L.append(I('v_add_u32 v%d, s52, v%d' % (vB, vB)))
        order = [('a', 0), ('b', 0), ('b', 1), ('b', 2), ('b', 3), ('a', 1), ('a', 2), ('a', 3), ('a', 4)]
        for kind, j in order:
            if kind == 'a':
                L.append(I('buffer_load_dwordx4 %s, v%d, s[8:11], s32 offen offset:%d' % (ar(AF(i, j), 4), vA4 if j == 4 else vA, 1024 * (j % 4))))
            else:
                L.append(I('buffer_load_dwordx4 %s, v%d, s[12:15], %s offen offset:%d' % (
                    vr(BF(i, j), 4), vB, 's%d' % (48 + j) if j else '0', 1024 * (i % 4))))
        return L

    for i in range(min(D, steps)):
        p.add(loads(i))
    srd(p, 16, 38, 3840 * 4, WS_MOD)
    srd(p, 20, 38, SZ_H, WS_X1)
    srd(p, 24, 40, 2048 * 1280)
    if not final:
        srd(p, 44, 38, SZ_ST, WS_ST)
        srd(p, 72, 38, SZ_H, WS_Z)
        srd(p, 76, 38, SZ_UP, WS_UP)
    p('''
    v_mov_b32 v63, 0
    v_lshrrev_b32 v23, 2, v0
    s_lshl_b32 s7, s5, 6
    v_add_u32 v27, s7, v23
    v_and_b32 v28, 3, v0
    v_mul_u32_u24 v24, 1280, v27
    v_lshl_add_u32 v24, v28, 4, v24
    s_mul_i32 s7, s6, 160
    v_add_u32 v24, s7, v24
    s_mul_i32 s7, s6, 10
    v_add_u32 v29, s7, v28
    v_lshrrev_b32 v25, 5, v27
    v_mul_u32_u24 v25, 40960, v25
    v_lshl_add_u32 v25, v29, 9, v25
    v_and_b32 v30, 31, v27
    v_lshl_add_u32 v25, v30, 4, v25
    v_lshlrev_b32 v26, 5, v29
    v_cmp_gt_u32 vcc, 2, v28
    v_mov_b32 v31, 0x%x
    v_cndmask_b32 v31, v31, v63, vcc
    v_add_u32 v32, v24, v31
    v_add_u32 v33, v25, v31
    v_add_u32 v34, v26, v31
    s_mov_b32 s53, 4096
    s_mov_b32 s54, %d
    s_mov_b32 s55, %d
    ''' % (HUGE, (5 if final else 2) * 2560, 4 * 2560))
    RES = 176
    GATE = 188
    CB = 212

    def epi_fetch():
        L = []
        for rnd in range(3):
            a24, a25, a26 = (24, 25, 26) if rnd < 2 else (32, 33, 34)
            if final:
                L.append(I('buffer_load_dwordx4 %s, v%d, s[20:23], %s offen offset:%d' % (vr(RES + 4 * rnd, 4), a25, '0' if rnd < 2 else 's53', 2048 * (rnd % 2))))
            else:
                L.append(I('buffer_load_dwordx4 %s, v%d, s[24:27], 0 offen offset:%d' % (vr(RES + 4 * rnd, 4), a24, 64 * rnd)))
            for hh in range(2):
                L.append(I('buffer_load_dwordx4 %s, v%d, s[16:19], s54 offen offset:%d' % (vr(GATE + 8 * rnd + 4 * hh, 4), a26, 128 * rnd + 16 * hh)))
                if not final:
                    L.append(I('buffer_load_dwordx4 %s, v%d, s[16:19], s55 offen offset:%d' % (vr(CB + 8 * rnd + 4 * hh, 4), a26, 128 * rnd + 16 * hh)))
        return L

    UW = 36
    UC = 4
    UA = 236
    side_pre, side_ld, side_valu = [], [], []
    if not final:
        pp = Prog()
        pp('''
        s_mul_i32 s56, s2, 1214
        s_lshr_b32 s56, s56, 16
        s_mul_i32 s57, s56, 54
        s_sub_u32 s57, s2, s57
        s_cmp_ge_u32 s57, 27
        s_cselect_b32 s80, s86, s84
        s_cselect_b32 s81, s87, s85
        s_cselect_b32 s3, 27, 0
        s_mov_b32 s82, 0x%x
        s_mov_b32 s83, 0x20000
        s_sub_u32 s3, s57, s3
        s_lshl_b32 s3, s3, 7
        s_mul_i32 s4, s56, 160
        s_mul_i32 s7, s%d, 40
        s_add_u32 s4, s4, s7
        v_lshrrev_b32 v14, 3, v2
        v_add_u32 v14, s4, v14
        v_mul_u32_u24 v15, 3456, v14
        v_and_b32 v16, 7, v2
        v_lshl_add_u32 v15, v16, 4, v15
        v_add_u32 v15, s3, v15
        v_lshlrev_b32 v14, 2, v14
        s_mov_b32 s4, %d
        ''' % (640 * 3456, sW, 3 * 2560))
        side_pre = pp.items
        for m in range(5):
            side_ld.append(I('s_mov_b32 s33, %d' % (m * 8 * 3456)))
            side_ld.append(I('buffer_load_dwordx4 %s, v15, s[80:83], s33 offen' % vr(UW + 4 * m, 4)))
            side_ld.append(I('buffer_load_dword v%d, v14, s[16:19], s55 offen offset:%d' % (UC + m, 32 * m)))
            side_ld.append(I('buffer_load_dword v%d, v14, s[16:19], s4 offen offset:%d' % (UC + 5 + m, 32 * m)))
        pp = Prog()
        for m in range(5):
            pp('v_add_f32 v%d, 1.0, v%d' % (UC + m, UC + m))
            bf16_round(pp, UC + m, UC + m)
            for j in range(4):
                pp('v_lshlrev_b32 v17, 16, v%d' % (UW + 4 * m + j))
                pp('v_and_b32 v18, 0xffff0000, v%d' % (UW + 4 * m + j))
                for wh in range(2):
                    cc = UC + 5 * wh + m
                    for hi in range(2):
                        acc = UA + 8 * wh + 2 * j + hi
                        if m == 0:
                            pp('v_mul_f32 v%d, v%d, v%d' % (acc, 17 + hi, cc))
                        else:
                            pp('v_fmac_f32 v%d, v%d, v%d' % (acc, 17 + hi, cc))
        for e in range(16):
            pp('v_add_f32_dpp v%d, v%d, v%d row_ror:8 row_mask:0xf bank_mask:0xf' % (UA + e, UA + e, UA + e))
        for swp in ('v_permlane16_swap_b32', 'v_permlane32_swap_b32'):
            for e in range(16):
                pp('v_mov_b32 v%d, v%d' % (UW + e, UA + e))
            for e in range(16):
                pp('%s v%d, v%d' % (swp, UW + e, UA + e))
            for e in range(16):
                pp('v_add_f32 v%d, v%d, v%d' % (UA + e, UA + e, UW + e))
        side_valu = pp.items
        p.add(side_pre)

    p.add(ST.st())
    sc = Sched()
    sc.rate = 1
    for i in range(steps):
        M = []
        for j in range(5):
            for qt in range(4):
                src = ar(ACC(qt, j), 4) if i > 0 else '0'
                M.append(I('%s %s, %s, %s, %s' % (MF, ar(ACC(qt, j), 4), ar(AF(i, j), 4), vr(BF(i, qt), 4), src)))
        g = sc.mf(M)
        if i + D < steps:
            sc.place(loads(i + D), g, g + 20)
        if i + D == steps:
            sc.place(epi_fetch(), g, g + 20)
        if not final and i == 2:
            sc.place(side_ld, g, g + 20)
    if not final:
        sc.place(side_valu, 20 * 12, 20 * 24)
    sc.emit(p)
    p.add(ST.st())
    p('''
    v_and_b32 v3, 15, v2
    v_mul_u32_u24 v3, 336, v3
    v_lshrrev_b32 v4, 4, v2
    v_lshl_add_u32 v3, v4, 4, v3
    s_mul_i32 s7, s%d, 21504
    v_add_u32 v3, s7, v3
    ''' % sW)
    for qt in range(4):
        for j in range(5):
            p('ds_write_b128 v3, %s offset:%d' % (ar(ACC(qt, j), 4), qt * 16 * 336 + 64 * j))
    if not final:
        p('''
        v_lshlrev_b32 v4, 5, v16
        s_lshl_b32 s7, s%d, 9
        s_add_u32 s7, s7, 86016
        v_add_u32 v4, s7, v4
        s_mov_b64 exec, 0xff
        ds_write_b128 v4, %s
        ds_write_b128 v4, %s offset:16
        ds_write_b128 v4, %s offset:256
        ds_write_b128 v4, %s offset:272
        s_mov_b64 exec, -1
        ''' % (sW, vr(UA, 4), vr(UA + 4, 4), vr(UA + 8, 4), vr(UA + 12, 4)))
    p.wait_lgkm0()
    p('s_barrier')
    p('''
    v_mul_u32_u24 v3, 336, v23
    v_lshl_add_u32 v3, v28, 5, v3
    v_add_u32 v4, 43008, v3
    ''')
    X = 64
    TMP = 96
    for rnd in range(3):
        for w in range(4):
            for hh in range(2):
                dst = X + 8 * rnd + 4 * hh if w == 0 else TMP + ((rnd * 3 + w - 1) * 2 + hh) * 4
                p('ds_read_b128 %s, v%d offset:%d' % (vr(dst, 4), 3 if w < 2 else 4, (w % 2) * 21504 + 128 * rnd + 16 * hh))
    if not final:
        p('''
        v_and_b32 v5, 127, v0
        v_lshlrev_b32 v5, 2, v5
        v_add_u32 v6, 86016, v5
        ds_read_b32 v56, v6
        ds_read_b32 v57, v6 offset:512
        ds_read_b32 v58, v6 offset:1024
        ds_read_b32 v59, v6 offset:1536
        ''')
    for rnd in range(3):
        for w in range(1, 4):
            for e in range(8):
                p('v_add_f32 v%d, v%d, v%d' % (X + 8 * rnd + e, X + 8 * rnd + e, TMP + (rnd * 3 + w - 1) * 8 + e))
        for e in range(8):
            x = X + 8 * rnd + e
            if e % 2 == 0:
                p('v_lshlrev_b32 v5, 16, v%d' % (RES + 4 * rnd + e // 2))
            else:
                p('v_and_b32 v5, 0xffff0000, v%d' % (RES + 4 * rnd + e // 2))
            p('v_fma_f32 v%d, v%d, v%d, v5' % (x, x, GATE + 8 * rnd + e))
        for j in range(4):
            p('v_cvt_pk_bf16_f32 v%d, v%d, v%d' % (36 + 4 * rnd + j, X + 8 * rnd + 2 * j, X + 8 * rnd + 2 * j + 1))
        if final:
            p('buffer_store_dwordx4 %s, v%d, s[24:27], 0 offen offset:%d' % (vr(36 + 4 * rnd, 4), 24 if rnd < 2 else 32, 64 * rnd))
        else:
            p('buffer_store_dwordx4 %s, v%d, s[20:23], %s offen offset:%d' % (vr(36 + 4 * rnd, 4), 25 if rnd < 2 else 33, '0' if rnd < 2 else 's53', 2048 * (rnd % 2)))
    if not final:
        for rnd in range(3):
            for j in range(4):
                p('v_lshlrev_b32 v%d, 16, v%d' % (X + 8 * rnd + 2 * j, 36 + 4 * rnd + j))
                p('v_and_b32 v%d, 0xffff0000, v%d' % (X + 8 * rnd + 2 * j + 1, 36 + 4 * rnd + j))
            for e in range(8):
                c = CB + 8 * rnd + e
                p('v_add_f32 v%d, 1.0, v%d' % (c, c))
            for j in range(4):
                c = CB + 8 * rnd + 2 * j
                p('v_cvt_pk_bf16_f32 v5, v%d, v%d' % (c, c + 1))
                p('v_lshlrev_b32 v%d, 16, v5' % c)
                p('v_and_b32 v%d, 0xffff0000, v5' % (c + 1))
            for e in range(8):
                c = CB + 8 * rnd + e
                p('v_mul_f32 v%d, v%d, v%d' % (c, c, X + 8 * rnd + e))
            for j in range(4):
                c = CB + 8 * rnd + 2 * j
                p('v_cvt_pk_bf16_f32 v%d, v%d, v%d' % (96 + 4 * rnd + j, c, c + 1))
            p('buffer_store_dwordx4 %s, v%d, s[72:75], %s offen offset:%d' % (vr(96 + 4 * rnd, 4), 25 if rnd < 2 else 33, '0' if rnd < 2 else 's53', 2048 * (rnd % 2)))
        p('v_add_f32 v5, v%d, v%d' % (X + 16, X + 17))
        for e in range(2, 8):
            p('v_add_f32 v5, v5, v%d' % (X + 16 + e))
        p('v_cmp_gt_u32 vcc, 2, v28')
        p('v_cndmask_b32 v5, 0, v5, vcc')
        for e in range(16):
            p('v_add_f32 v5, v5, v%d' % (X + e))
        for mod in ('quad_perm:[1,0,3,2]', 'quad_perm:[2,3,0,1]'):
            p('v_add_f32_dpp v5, v5, v5 %s row_mask:0xf bank_mask:0xf' % mod)
        p('v_mul_f32 v5, %s, v5' % f32hex(1.0 / 80))
        p('v_sub_f32 v7, v%d, v5' % (X + 16))
        p('v_mul_f32 v6, v7, v7')
        for e in range(1, 8):
            p('v_sub_f32 v7, v%d, v5' % (X + 16 + e))
            p('v_fmac_f32 v6, v7, v7')
        p('v_cndmask_b32 v6, 0, v6, vcc')
        for e in range(16):
            p('v_sub_f32 v7, v%d, v5' % (X + e))
            p('v_fmac_f32 v6, v7, v7')
        for mod in ('quad_perm:[1,0,3,2]', 'quad_perm:[2,3,0,1]'):
            p('v_add_f32_dpp v6, v6, v6 %s row_mask:0xf bank_mask:0xf' % mod)
        p('''
        v_mov_b32 v4, v5
        v_mov_b32 v5, v6
        v_lshlrev_b32 v3, 6, v27
        s_lshl_b32 s7, s6, 3
        v_add_u32 v3, s7, v3
        v_cmp_eq_u32 vcc, 0, v28
        v_cndmask_b32 v3, v31, v3, vcc
        v_cmp_eq_u32 vcc, 1, v28
        v_mov_b32 v7, 0x%x
        v_cndmask_b32 v3, v3, v7, vcc
        buffer_store_dwordx2 v[4:5], v3, s[44:47], 0 offen
        v_add_f32 v56, v56, v57
        v_add_f32 v58, v58, v59
        v_add_f32 v56, v56, v58
        s_mul_i32 s7, s56, %d
        s_lshl_b32 s3, s57, 8
        s_add_u32 s7, s7, s3
        v_lshrrev_b32 v6, 6, v0
        v_mul_u32_u24 v6, %d, v6
        v_lshl_add_u32 v6, v2, 2, v6
        v_cmp_gt_u32 vcc, 128, v0
        v_cndmask_b32 v6, v7, v6, vcc
        buffer_store_dword v56, v6, s[76:79], s7 offen
        ''' % (HUGE, 2 * 3456 * 4, 3456 * 4))
    ST.end(p)
    p('%s:' % E)
    p('s_endpgm')
    return kernel_text(name + '_kernel', finalize(p, True), 256, 224)


def gen_ffn1():
    p = Prog()
    MF = MF32
    ACC = lambda qt, m, f2: 80 + ((qt * 2 + m) * 2 + f2) * 16
    HF = lambda f: (f % 48) * 4
    AW = lambda ks, m, f2: 192 + ((ks % 4) * 4 + m * 2 + f2) * 4
    vDW = 16
    vTR = 18
    vH = 24
    vST = 26
    vU = 27
    vO = 28
    vRS = 30
    vUC = 34
    UCB = 36
    sW, sM0, sT, sF = 28, 29, 30, 31
    SPLIT = 6
    p('''
    s_cmp_ge_u32 s2, 224
    s_cbranch_scc1 L_ffn1_end
    s_and_b32 s3, s2, 7
    s_lshr_b32 s4, s2, 3
    s_and_b32 s5, s3, 1
    s_lshl_b32 s5, s5, 2
    s_and_b32 s6, s4, 3
    s_add_u32 s5, s5, s6
    s_lshr_b32 s3, s3, 1
    s_mul_i32 s3, s3, 7
    s_lshr_b32 s4, s4, 2
    s_add_u32 s6, s3, s4
    s_cmp_ge_u32 s6, 27
    s_cbranch_scc1 L_ffn1_end
    ''')
    ST = Stamps(4)
    ST.begin(p)
    p('''
    s_load_dwordx4 s[36:39], s[0:1], %d
    s_load_dwordx2 s[40:41], s[0:1], %d
    v_lshrrev_b32 v1, 6, v0
    v_and_b32 v2, 63, v0
    v_readfirstlane_b32 s%d, v1
    s_lshl_b32 s%d, s6, 7
    v_lshrrev_b32 v3, 4, v2
    v_and_b32 v4, 15, v2
    v_lshrrev_b32 v5, 5, v2
    v_bfe_u32 v6, v2, 2, 2
    v_and_b32 v7, 3, v2
    s_lshl_b32 s%d, s%d, 11
    v_and_b32 v8, 1, v3
    v_lshlrev_b32 v8, 2, v8
    v_and_b32 v9, 7, v2
    v_xor_b32 v8, v8, v9
    v_lshlrev_b32 v8, 4, v8
    v_lshrrev_b32 v9, 3, v2
    v_lshl_add_u32 v9, v1, 4, v9
    v_mul_u32_u24 v9, 3456, v9
    v_add_u32 v%d, v9, v8
    v_add_u32 v%d, %d, v%d
    s_lshl_b32 s7, s5, 3
    s_lshl_b32 s3, s%d, 1
    s_add_u32 s7, s7, s3
    s_mul_i32 s3, s7, 40960
    v_lshlrev_b32 v10, 4, v2
    v_add_u32 v%d, s3, v10
    v_add_u32 v%d, 40960, v%d
    s_lshl_b32 s7, s7, 11
    v_and_b32 v10, 31, v2
    v_lshlrev_b32 v10, 6, v10
    v_add_u32 v%d, s7, v10
    s_waitcnt lgkmcnt(0)
    ''' % (KA['wg'], KA['ws'], sW, sF, sM0, sW, vDW, vDW + 1, 8 * 3456 - 1024, vDW, sW, vH, vH + 1, vH, vST))
    srd(p, 8, 36, 640 * 3456)
    srd(p, 12, 38, 640 * 3456)
    srd(p, 20, 40, SZ_H, WS_Z)

    def dma_w(c):
        L = [I('s_add_u32 s%d, s%d, %d' % (sT, sF, c * 64 * 3456))]
        for m in range(2):
            L.append(I('s_add_u32 m0, s%d, %d' % (sM0, c * 16384 + m * 8192)))
            for j in range(2):
                L.append(I('buffer_load_dwordx4 v%d, s[%d:%d], s%d offen offset:%d lds' % (vDW + j, 8 + 4 * m, 11 + 4 * m, sT, 1024 * j), tag='w%d' % c))
        return L

    def ld_h(c):
        L = [I('s_mov_b32 s34, %d' % (c * 4096))]
        for ks in range(4):
            for qt in range(2):
                f = (c * 4 + ks) * 2 + qt
                L.append(I('buffer_load_dwordx4 %s, v%d, s[20:23], s34 offen offset:%d' % (ar(HF(f), 4), vH + qt, 1024 * ks)))
        return L

    NPRE = 2
    for c in range(NPRE):
        p.add(dma_w(c))
        p.add(ld_h(c))
    srd(p, 24, 40, SZ_ACT, WS_ACT)
    srd(p, 44, 40, SZ_ST, WS_ST)
    srd(p, 48, 40, SZ_UP, WS_UP)
    p('''
    v_lshl_add_u32 v8, v5, 3, v6
    v_lshlrev_b32 v8, 7, v8
    v_and_b32 v9, 1, v3
    v_lshl_add_u32 v8, v9, 5, v8
    v_and_b32 v9, 1, v7
    v_lshl_add_u32 v8, v9, 4, v8
    v_lshrrev_b32 v9, 1, v7
    v_lshl_add_u32 v8, v9, 3, v8
    v_lshrrev_b32 v10, 1, v6
    ''')
    for f2 in range(2):
        p('v_xor_b32 v9, %d, v10' % f2)
        p('v_lshl_add_u32 v%d, v9, 6, v8' % (vTR + f2))
        p('v_add_u32 v%d, 0x10000, v%d' % (vTR + 2 + f2, vTR + f2))
        p('v_add_u32 v%d, 0x20000, v%d' % (vTR + 4 + f2, vTR + f2))
    p('''
    v_lshrrev_b32 v8, 7, v0
    v_mul_u32_u24 v8, 3456, v8
    v_and_b32 v9, 1, v1
    v_mul_u32_u24 v9, 1728, v9
    v_add3_u32 v8, v8, v9, v2
    s_lshl_b32 s3, s6, 6
    v_add_u32 v8, s3, v8
    v_lshlrev_b32 v%d, 2, v8
    v_lshlrev_b32 v%d, 5, v5
    s_lshl_b32 s7, s5, 4
    s_lshl_b32 s3, s%d, 2
    s_add_u32 s7, s7, s3
    s_mul_i32 s7, s7, 54
    s_lshl_b32 s3, s6, 1
    s_add_u32 s7, s7, s3
    s_lshl_b32 s7, s7, 10
    v_and_b32 v8, 1, v3
    v_mul_u32_u24 v8, %d, v8
    v_lshl_add_u32 v8, v5, 8, v8
    v_lshl_add_u32 v8, v4, 4, v8
    v_add_u32 v%d, s7, v8
    v_add_u32 v%d, %d, v%d
    ''' % (vU, vUC, sW, 54 * 1024, vO, vO + 1, 2 * 54 * 1024, vO))
    small = []
    for qt in range(2):
        for j in range(4):
            small.append(I('buffer_load_dwordx4 %s, v%d, s[44:47], 0 offen offset:%d' % (vr(36 + 16 * qt + 4 * j, 4), vST, 2048 * qt + 16 * j)))
    for ks in range(4):
        small.append(I('s_mov_b32 s33, %d' % (ks * 2 * 3456 * 4)))
        small.append(I('buffer_load_dword v%d, v%d, s[48:51], s33 offen' % (68 + ks, vU)))
    pp = Prog()
    for qt in range(2):
        b = 36 + 16 * qt
        pp('v_add_f32 v8, v%d, v%d' % (b, b + 2))
        for j in range(2, 8):
            pp('v_add_f32 v8, v8, v%d' % (b + 2 * j))
        pp('v_mul_f32 v8, %s, v8' % f32hex(0.125))
        pp('v_add_f32 v9, v%d, v%d' % (b + 1, b + 3))
        for j in range(2, 8):
            pp('v_add_f32 v9, v9, v%d' % (b + 1 + 2 * j))
        pp('v_sub_f32 v10, v%d, v8' % b)
        pp('v_mul_f32 v12, v10, v10')
        for j in range(1, 8):
            pp('v_sub_f32 v10, v%d, v8' % (b + 2 * j))
            pp('v_fmac_f32 v12, v10, v10')
        pp('v_mov_b32 v10, %s' % f32hex(80.0))
        pp('v_fmac_f32 v9, v12, v10')
        pp('v_mov_b32 v10, %s' % f32hex(1e-5))
        pp('v_fmac_f32 v10, %s, v9' % f32hex(1.0 / 640))
        pp('v_rsq_f32 v%d, v10' % (vRS + qt))
        pp('v_mul_f32 v%d, v8, v%d' % (vRS + 2 + qt, vRS + qt))
        pp('v_sub_f32 v%d, 0, v%d' % (vRS + 2 + qt, vRS + 2 + qt))
    pp('''
    v_add_f32 v68, v68, v69
    v_add_f32 v70, v70, v71
    v_add_f32 v68, v68, v70
    v_lshlrev_b32 v8, 2, v0
    ds_write_b32 v8, v68
    ''')
    stat_items = pp.items

    def rd_w(kk):
        c, ks = kk // 4, kk % 4
        L = []
        for m in range(2):
            for f2 in range(2):
                for a in range(2):
                    L.append(I('ds_read_b64_tr_b16 %s, v%d offset:%d' % (ar(AW(kk, m, f2) + 2 * a, 2), vTR + 2 * (c // 4) + f2,
                                                                         (c % 4) * 16384 + m * 8192 + (16 * ks + 4 * a) * 128)))
        return L

    def mf(kk, qts):
        L = []
        for m in range(2):
            for f2 in range(2):
                for qt in qts:
                    src = vr(ACC(qt, m, f2), 16) if kk > 0 else '0'
                    L.append(I('%s %s, %s, %s, %s' % (MF, vr(ACC(qt, m, f2), 16), ar(AW(kk, m, f2), 4), ar(HF(kk * 2 + qt), 4), src)))
        return L

    def epi(qt):
        L = []
        n = 0
        for f2 in range(2):
            for t2 in range(2):
                for wh in range(2):
                    for m in range(2):
                        for hh in range(2):
                            L.append(I('ds_read_b128 %s, v%d offset:%d' % (vr(UCB + (wh * 2 + m) * 8 + 4 * hh, 4), vUC,
                                                                          (wh * 128 + m * 64 + 32 * f2 + 16 * t2) * 4 + 16 * hh)))
                g, u = ACC(qt, 0, f2) + 8 * t2, ACC(qt, 1, f2) + 8 * t2
                tt = 208 + 12 * (n % 2)
                n += 1
                for m, r in ((0, g), (1, u)):
                    for e in range(8):
                        L.append(I('v_fma_f32 v%d, v%d, v%d, v%d' % (UCB + m * 8 + e, UCB + m * 8 + e, vRS + 2 + qt, UCB + 16 + m * 8 + e)))
                    for e in range(8):
                        L.append(I('v_fma_f32 v%d, v%d, v%d, v%d' % (r + e, r + e, vRS + qt, UCB + m * 8 + e)))
                for e in range(8):
                    L.append(I('v_mul_f32 v%d, %s, v%d' % (tt + e, f32hex(-LOG2E), g + e)))
                for e in range(8):
                    L.append(I('v_exp_f32 v%d, v%d' % (tt + e, tt + e)))
                for e in range(8):
                    L.append(I('v_mul_f32 v%d, v%d, v%d' % (g + e, g + e, u + e)))
                for e in range(8):
                    L.append(I('v_add_f32 v%d, 1.0, v%d' % (tt + e, tt + e)))
                for e in range(8):
                    L.append(I('v_rcp_f32 v%d, v%d' % (tt + e, tt + e)))
                for e in range(8):
                    L.append(I('v_mul_f32 v%d, v%d, v%d' % (g + e, g + e, tt + e)))
                for j in range(4):
                    L.append(I('v_cvt_pk_bf16_f32 v%d, v%d, v%d' % (tt + 8 + j, g + 2 * j, g + 2 * j + 1)))
                L.append(I('buffer_store_dwordx4 %s, v%d, s[24:27], 0 offen offset:%d' % (vr(tt + 8, 4), vO + qt, f2 * 1024 + t2 * 512)))
        return L

    p.wait_vm_tag('w0')
    p('s_barrier')
    p.add(ST.st())
    p.add(rd_w(0))
    p.add(rd_w(1))
    sc = Sched()
    sc.queue(dma_w(2) + ld_h(2), 0)
    sc.queue(small, 0)
    for c in range(3, 10):
        sc.queue(dma_w(c), 0)
        sc.queue(ld_h(c), max(0, 32 * (c - 5)))
    seq = [(kk, (0, 1)) for kk in range(4 * SPLIT)] + [(kk, (0,)) for kk in range(4 * SPLIT, 40)] + [(kk, (1,)) for kk in range(4 * SPLIT, 40)]
    starts = []
    for kk, qts in seq:
        starts.append(sc.mf(mf(kk, qts)))
    starts.append(len(sc.m))
    barr_done = 0
    for i, (kk, qts) in enumerate(seq):
        if i + 2 < len(seq):
            k2 = seq[i + 2][0]
            pre = []
            c2 = k2 // 4
            if c2 > barr_done:
                pre = [WVM('w%d' % c2), I('s_barrier')]
                barr_done = c2
            sc.place(pre + rd_w(k2), starts[i], starts[i + 1])
    sc.place(stat_items, starts[12], starts[20])
    q1 = 4 * SPLIT + (40 - 4 * SPLIT)
    sc.place(epi(0), starts[q1] + 1, starts[len(seq)])
    sc.emit(p)
    p.add(ST.st())
    p.add(epi(1))
    ST.end(p)
    p('L_ffn1_end:')
    p('s_endpgm')
    return kernel_text('ffn1_kernel', finalize(p, True), 256, 256)


def main():
    ks = []
    ks.append(('pre_kernel', 256, 320, 1024, gen_pre()))
    ks.append(('attn_kernel', 256, 256, 163840, gen_attn()))
    ks.append(('wo_kernel', 256, 256, 90112, gen_gemm_n640('wo', 128, 32, WS_WOP, SZ_WOP, WS_O, SZ_O, False)))
    ks.append(('ffn1_kernel', 224, 256, 163840, gen_ffn1()))
    ks.append(('down_kernel', 256, 256, 90112, gen_gemm_n640('down', 54, 14, WS_WDP, SZ_WDP, WS_ACT, SZ_ACT, True)))
    out = []
    for name, g, b, lds, _ in ks:
        out.append('; @launch kernel=%s grid=(%d,1,1) block=(%d,1,1) lds=%d' % (name, g, b, lds))
    out.append('.amdgcn_target "amdgcn-amd-amdhsa--gfx950"')
    out.append('.text')
    for k in ks:
        out.append(k[4][0])
    out.append('.section .rodata,"a"')
    for k in ks:
        out.append('.p2align 6')
        out.append(k[4][1])
    path = sys.argv[1] if len(sys.argv) > 1 else 'adaLN_cond__sliding_block_cached__swiglu_ffn__prompt.s'
    open(path, 'w').write('\n'.join(out))
    print('wrote', path, sum(len(x) for x in out), 'bytes')


if __name__ == '__main__':
    main()
```

```python
import os
import sys
import struct
from asmfw import *

KA = dict(x=0, k=8, v=16, wq=24, wo=32, bx=40, wg=48, wu=56, wd=64, c=72, wmod=80, out=88, dbg=96, ws=104)
WS_MOD = 0
WS_MODB = 0x4000
WS_FLG = 0x8000
WS_H = 1 << 20
WS_O = 4 << 20
WS_X1 = 20 << 20
WS_ST = 23 << 20
WS_ACT = 24 << 20
WS_Z = 32 << 20
WS_WOP = 36 << 20
WS_WDP = 42 << 20
WS_UP = 46 << 20
WS_SIZE = 48 << 20
HUGE = 0x40000000
LOG2E = 1.4426950408889634
PROF = int(os.environ.get('PROF', '0'))
ABL = int(os.environ.get('ABL', '0'))
PUREH = int(os.environ.get('PUREH', '0'))
NPH = int(os.environ.get('NPH', '5'))
WS_PROF = 200 << 20
MF32 = 'v_mfma_f32_32x32x16_bf16'
MF16 = 'v_mfma_f32_16x16x32_bf16'
SM_THR = 2.0 ** 64
SW = 96
WSR = 's[96:99]'
sWV = 100
F_H, F_O, F_X, F_A, F_PK, F_U = 0, 16, 32, 48, 64, 65


def f32hex(x):
    return '0x%08x' % struct.unpack('<I', struct.pack('<f', x))[0]


def srd(p, d, base_lo, size, off=0):
    if off:
        p('s_add_u32 s%d, s%d, 0x%x' % (d, base_lo, off))
        p('s_addc_u32 s%d, s%d, 0' % (d + 1, base_lo + 1))
    else:
        p('s_mov_b32 s%d, s%d' % (d, base_lo))
        p('s_mov_b32 s%d, s%d' % (d + 1, base_lo + 1))
    p('s_mov_b32 s%d, 0x%x' % (d + 2, size))
    p('s_mov_b32 s%d, 0x20000' % (d + 3))


def vr(b, n):
    return 'v[%d:%d]' % (b, b + n - 1)


def ar(b, n):
    return 'a[%d:%d]' % (b, b + n - 1)


def bf16_round(p, dst, src):
    p('v_cvt_pk_bf16_f32 v%d, v%d, v%d' % (dst, src, src))
    p('v_and_b32 v%d, 0xffff0000, v%d' % (dst, dst))


class Stamps:
    def __init__(self, kidx):
        self.n = 0
        self.kidx = kidx

    def st(self):
        if not PROF:
            return []
        self.n += 1
        assert self.n <= 15
        return [I('s_memtime s[%d:%d]' % (62 + 2 * self.n, 63 + 2 * self.n))]

    def begin(self, p):
        if PROF:
            p('s_memrealtime s[60:61]')
            p.add(self.st())

    def end(self, p):
        if not PROF:
            return
        p.add(self.st())
        p('s_memrealtime s[62:63]')
        p('s_load_dwordx2 s[58:59], s[0:1], %d' % KA['ws'])
        p('s_waitcnt lgkmcnt(0)')
        p('s_mov_b64 exec, -1')
        srd(p, 4, 58, 1 << 20, WS_PROF + self.kidx * 131072)
        p('v_lshrrev_b32 v1, 6, v0')
        p('s_lshl_b32 s3, s2, 2')
        p('v_add_u32 v1, s3, v1')
        p('v_lshlrev_b32 v1, 7, v1')
        p('v_mov_b32 v2, s60')
        p('buffer_store_dword v2, v1, s[4:7], 0 offen')
        p('v_mov_b32 v2, s62')
        p('buffer_store_dword v2, v1, s[4:7], 0 offen offset:4')
        p('v_mov_b32 v2, %d' % self.n)
        p('buffer_store_dword v2, v1, s[4:7], 0 offen offset:8')
        for i in range(self.n):
            p('v_mov_b32 v2, s%d' % (64 + 2 * i))
            p('buffer_store_dword v2, v1, s[4:7], 0 offen offset:%d' % (12 + 4 * i))


def gen_pre():
    p = Prog()
    p('''
    s_cmp_ge_u32 s2, 256
    s_cbranch_scc1 L_pre_end
    ''')
    ST = Stamps(0)
    ST.begin(p)
    p('''
    s_load_dwordx4 s[4:7], s[0:1], %d
    s_load_dwordx2 s[10:11], s[0:1], %d
    s_load_dwordx2 s[32:33], s[0:1], %d
    s_load_dwordx2 s[34:35], s[0:1], %d
    v_lshrrev_b32 v1, 6, v0
    v_and_b32 v2, 63, v0
    v_readfirstlane_b32 s28, v1
    s_and_b32 s3, s2, 7
    s_lshr_b32 s29, s2, 3
    s_and_b32 s30, s29, 3
    s_lshr_b32 s31, s29, 2
    s_lshl_b32 s31, s31, 3
    s_add_u32 s31, s31, s3
    s_lshl_b32 s36, s31, 2
    s_add_u32 s36, s36, s30
    s_lshl_b32 s30, s36, 5
    s_cmp_ge_u32 s31, 60
    s_cselect_b32 s37, 0x%x, 0
    s_waitcnt lgkmcnt(0)
    ''' % (KA['c'], KA['ws'], KA['x'], KA['wq'], HUGE))
    srd(p, 12, 4, 1280)
    srd(p, 16, 6, 640 * 7680)
    srd(p, 20, 10, WS_SIZE)
    srd(p, 40, 32, 2048 * 1280)
    srd(p, 48, 34, 640 * 8192)
    p('''
    s_cmp_eq_u32 s28, 4
    s_cbranch_scc0 L_pre_work
    ''')
    p('''
    v_lshlrev_b32 v3, 2, v2
    s_lshl_b32 s38, s2, 7
    s_add_u32 s38, s38, %d
    v_mov_b32 v4, 0
    v_cmp_gt_u32 vcc, 32, v2
    v_mov_b32 v5, 0x%x
    v_cndmask_b32 v3, v5, v3, vcc
    s_cmp_lt_u32 s2, 128
    s_cselect_b32 s38, s38, 0x%x
    buffer_store_dword v4, v3, s[20:23], s38 offen
    s_mul_i32 s38, s2, 10240
    v_lshlrev_b32 v3, 6, v2
    buffer_load_dword v8, v3, s[40:43], s38 offen
    s_add_u32 s38, s38, 4096
    buffer_load_dword v9, v3, s[40:43], s38 offen
    s_add_u32 s38, s38, 2048
    buffer_load_dword v10, v3, s[40:43], s38 offen
    s_getpc_b64 s[44:45]
    L_pre_pc:
    s_add_u32 s44, s44, mega_kernel-L_pre_pc
    s_addc_u32 s45, s45, 0
    s_mov_b32 s46, L_code_end-mega_kernel
    s_mov_b32 s47, 0x20000
    s_mul_i32 s38, s29, 4096
    buffer_load_dword v11, v3, s[44:47], s38 offen
    s_mul_i32 s29, s29, %d
    s_lshr_b32 s3, s3, 1
    s_lshl_b32 s3, s3, 11
    s_add_u32 s29, s29, s3
    v_lshrrev_b32 v3, 5, v2
    v_lshlrev_b32 v3, 13, v3
    v_and_b32 v4, 31, v2
    v_lshl_add_u32 v3, v4, 6, v3
    s_barrier
    ''' % (WS_FLG, HUGE, HUGE, 20 * 8192))
    for m in range(10):
        p('buffer_load_dword v%d, v3, s[48:51], s29 offen' % (12 + m))
        p('s_add_u32 s29, s29, 16384')
    p('s_endpgm')
    p('L_pre_work:')
    p.reset()
    p('''
    v_lshrrev_b32 v3, 1, v2
    v_mul_u32_u24 v4, 160, v1
    v_add_u32 v3, v3, v4
    v_lshlrev_b32 v5, 1, v3
    v_mul_u32_u24 v4, 7680, v3
    v_and_b32 v6, 1, v2
    v_lshlrev_b32 v6, 4, v6
    v_add3_u32 v4, v4, v6, s30
    v_add_u32 v4, s37, v4
    ''')
    for m in range(5):
        p('buffer_load_ushort v%d, v5, s[12:15], 0 offen offset:%d' % (8 + m, 64 * m))
    for m in range(5):
        p('s_mov_b32 s38, %d' % (m * 32 * 7680))
        p('buffer_load_dwordx4 %s, v4, s[16:19], s38 offen' % vr(16 + 4 * m, 4))
    for m in range(5):
        c = 8 + m
        p('v_lshlrev_b32 v%d, 16, v%d' % (c, c))
        p('v_mul_f32 v40, %s, v%d' % (f32hex(-LOG2E), c))
        p('v_exp_f32 v40, v40')
        p('v_add_f32 v40, 1.0, v40')
        p('v_rcp_f32 v40, v40')
        p('v_mul_f32 v%d, v%d, v40' % (c, c))
        bf16_round(p, c, c)
    for m in range(5):
        for j in range(4):
            src = 16 + 4 * m + j
            p('v_lshlrev_b32 v40, 16, v%d' % src)
            p('v_and_b32 v41, 0xffff0000, v%d' % src)
            if m == 0:
                p('v_mul_f32 v%d, v40, v8' % (48 + 2 * j))
                p('v_mul_f32 v%d, v41, v8' % (49 + 2 * j))
            else:
                p('v_fmac_f32 v%d, v40, v%d' % (48 + 2 * j, 8 + m))
                p('v_fmac_f32 v%d, v41, v%d' % (49 + 2 * j, 8 + m))
    for mod in ('quad_perm:[2,3,0,1]', 'row_ror:4', 'row_ror:8'):
        for e in range(8):
            p('v_add_f32_dpp v%d, v%d, v%d %s row_mask:0xf bank_mask:0xf' % (48 + e, 48 + e, 48 + e, mod))
    p('''
    v_lshrrev_b32 v7, 4, v0
    v_lshlrev_b32 v7, 6, v7
    v_lshl_add_u32 v7, v6, 1, v7
    v_and_b32 v40, 14, v0
    v_cmp_eq_u32 vcc, 0, v40
    s_and_saveexec_b64 s[52:53], vcc
    ds_write_b128 v7, v[48:51]
    ds_write_b128 v7, v[52:55] offset:16
    s_mov_b64 exec, s[52:53]
    ''')
    p.wait_lgkm0()
    p('s_barrier')
    p('''
    s_cmp_lg_u32 s28, 0
    s_cbranch_scc1 L_pre_fin
    v_and_b32 v40, 15, v0
    v_lshlrev_b32 v40, 2, v40
    ''')
    for g in range(16):
        p('ds_read_b32 v%d, v40 offset:%d' % (16 + g, 64 * g))
    for g in range(1, 16):
        p('v_add_f32 v16, v16, v%d' % (16 + g))
    bf16_round(p, 16, 16)
    p('''
    v_lshrrev_b32 v41, 1, v40
    v_add_u32 v41, s30, v41
    s_lshl_b32 s30, s30, 1
    v_add_u32 v40, s30, v40
    v_add_u32 v40, s37, v40
    s_cmp_ge_u32 s31, 10
    s_cselect_b32 s38, 1.0, 0
    v_add_f32 v17, s38, v16
    v_cvt_pk_bf16_f32 v17, v17, v17
    s_cmp_lt_u32 s31, 20
    s_cselect_b32 s38, %d, 0x%x
    s_mov_b64 exec, 0xffff
    buffer_store_dword v16, v40, s[20:23], 0 offen
    buffer_store_short v17, v41, s[20:23], s38 offen
    s_mov_b64 exec, -1
    L_pre_fin:
    ''' % (WS_MODB, HUGE))
    ST.end(p)
    p('''
    L_pre_end:
    s_endpgm
    ''')
    return kernel_text('pre_kernel', finalize(p), 64, 0, 102)


def pack_voffsets(p, dst, lane, t0):
    a, b, c, d, e = t0, t0 + 1, t0 + 2, t0 + 3, t0 + 4
    for m in range(5):
        p('v_add_u32 v%d, %d, v%d' % (a, 64 * m, lane))
        p('v_mul_u32_u24 v%d, 6554, v%d' % (b, a))
        p('v_lshrrev_b32 v%d, 16, v%d' % (b, b))
        p('v_mul_u32_u24 v%d, 10, v%d' % (c, b))
        p('v_sub_u32 v%d, v%d, v%d' % (c, a, c))
        p('v_and_b32 v%d, 0x13, v%d' % (d, b))
        p('v_bfe_u32 v%d, v%d, 2, 1' % (e, b))
        p('v_lshl_add_u32 v%d, v%d, 3, v%d' % (d, e, d))
        p('v_bfe_u32 v%d, v%d, 3, 1' % (e, b))
        p('v_lshl_add_u32 v%d, v%d, 2, v%d' % (d, e, d))
        p('v_mul_u32_u24 v%d, 1280, v%d' % (d, d))
        p('v_lshl_add_u32 v%d, v%d, 4, v%d' % (d, c, d))
        p('v_subrev_u32 v%d, %d, v%d' % (dst + m, 1024 * (m % 4), d))


_uid = [0]


def signal(p, line, sgrp, count, t0, pre_waited=False):
    _uid[0] += 1
    L = 'L_sig%d' % _uid[0]
    if not pre_waited:
        p.wait_vm0()
    p('s_barrier')
    p('''
    s_cmp_lg_u32 s%d, 0
    s_cbranch_scc1 %s
    s_mov_b64 exec, 1
    v_mov_b32 v%d, 1
    v_mov_b32 v%d, %d
    v_mov_b32 v%d, 1
    buffer_atomic_add v%d, v%d, %s, s%d offen sc0
    s_waitcnt vmcnt(0)
    v_cmp_eq_u32 vcc, %d, v%d
    v_mov_b32 v%d, 0x%x
    v_cndmask_b32 v%d, v%d, v%d, vcc
    buffer_store_dword v%d, v%d, %s, s%d offen offset:1024 sc1
    s_mov_b64 exec, -1
    %s:
    ''' % (sWV, L, t0, t0 + 1, WS_FLG + line * 128, t0 + 2, t0, t0 + 1, WSR, sgrp, count - 1, t0,
           t0 + 3, HUGE, t0 + 1, t0 + 3, t0 + 1, t0 + 2, t0 + 1, WSR, sgrp, L))


def count_only(line, t0):
    return [[I('v_cmp_eq_u32 vcc, 0, v0'), I('v_mov_b32 v%d, 1' % t0), I('v_mov_b32 v%d, 0x%x' % (t0 + 1, HUGE)),
             I('v_mov_b32 v%d, %d' % (t0 + 2, WS_FLG + line * 128)),
             I('v_cndmask_b32 v%d, v%d, v%d, vcc' % (t0 + 1, t0 + 1, t0 + 2)),
             I('buffer_atomic_add v%d, v%d, %s, 0 offen' % (t0, t0 + 1, WSR))]]


def wait_word(p, byte_off, sgrp, minval, t0):
    _uid[0] += 1
    L = 'L_poll%d' % _uid[0]
    p('''
    v_mov_b32 v%d, %d
    s_mov_b32 s101, 0
    %s:
    buffer_load_dword v%d, v%d, %s, %s offen sc1
    s_add_u32 s101, s101, 1
    s_waitcnt vmcnt(0)
    v_cmp_gt_u32 vcc, %d, v%d
    s_cbranch_vccz %s_go
    s_sleep 2
    s_cmp_lt_u32 s101, 0x20000
    s_cbranch_scc1 %s
    %s_go:
    ''' % (t0, byte_off, L, t0 + 1, t0, WSR, sgrp, minval, t0 + 1, L, L, L))
    p.reset()


def phase_attn(p, ST):
    MF = MF32
    QF = lambda qt, t: 16 + (qt * 8 + t) * 4
    QA = lambda qt, dt: 80 + (qt * 4 + dt) * 16
    S = lambda qt: 80 + qt * 16
    P = lambda qt, kk: 112 + (qt * 2 + kk) * 4
    NM = lambda qt: 144 + 16 * qt
    vPK, vPT, vPS, vPF, vPW = 8, 13, 14, 15, 7
    vKA, vTR, vDK, vDV, vDW, vH, vO, vLT, vLS, vT = 208, 216, 228, 232, 233, 237, 239, 240, 242, 244
    HF = lambda f: (f % 48) * 4
    AW = lambda ks, dt: 192 + ((ks % 4) * 4 + dt) * 4
    OA = lambda qt, dt: (qt * 4 + dt) * 16
    KFR = lambda t: 128 + 4 * t
    VFR = lambda dt, kk: 160 + (dt * 2 + kk) * 4
    PKF = lambda j: 192 + 4 * j
    sW, sM0, sHD, sT, sKV, sWQ = sWV, 29, 30, 31, 32, 33
    def dma_k(c):
        L = [I('s_add_u32 m0, s%d, %d' % (sM0, (c % 4) * 16384)),
             I('s_add_u32 s%d, s%d, %d' % (sT, sKV, c * 16384))]
        for j in range(4):
            L.append(I('buffer_load_dwordx4 v%d, s[12:15], s%d offen offset:%d lds' % (vDK + j, sT, 1024 * j), tag='k%d' % c))
        return L

    def dma_v(c):
        L = [I('s_add_u32 m0, s%d, %d' % (sM0, (4 + c % 4) * 16384)),
             I('s_add_u32 s%d, s%d, %d' % (sT, sKV, c * 16384))]
        for j in range(4):
            L.append(I('buffer_load_dwordx4 v%d, s[16:19], s%d offen offset:%d lds' % (vDV, sT, 1024 * j), tag='v%d' % c))
        return L

    def ld_h(c):
        L = [I('s_mov_b32 s34, %d' % (WS_H + c * 4096))]
        for ks in range(4):
            for qt in range(2):
                f = (c * 4 + ks) * 2 + qt
                L.append(I('buffer_load_dwordx4 %s, v%d, %s, s34 offen offset:%d sc1' % (ar(HF(f), 4), vH + qt, WSR, 1024 * ks)))
        return L

    def setup(p):
        p('''
        s_lshl_b32 s46, s45, 3
        s_lshl_b32 s47, s%d, 1
        s_add_u32 s46, s46, s47
        s_mul_i32 s46, s46, 40960
        v_lshlrev_b32 v%d, 4, v2
        v_add_u32 v%d, s46, v%d
        v_add_u32 v%d, 40960, v%d
        v_lshl_add_u32 v8, v5, 3, v6
        v_lshlrev_b32 v8, 8, v8
        v_and_b32 v9, 1, v3
        v_lshl_add_u32 v8, v9, 5, v8
        v_and_b32 v9, 1, v7
        v_lshl_add_u32 v8, v9, 4, v8
        v_lshrrev_b32 v9, 1, v7
        v_lshl_add_u32 v8, v9, 3, v8
        ''' % (sW, vPS, vH, vPS, vH + 1, vH))
        for dt in range(4):
            p('v_xor_b32 v9, %d, v6' % dt)
            p('v_lshl_add_u32 v%d, v9, 6, v8' % (vTR + dt))
            p('v_add_u32 v%d, 0x10000, v%d' % (vTR + 4 + dt, vTR + dt))
            p('v_add_u32 v%d, 0x20000, v%d' % (vTR + 8 + dt, vTR + dt))
        p('''
        v_and_b32 v8, 0x13, v2
        v_bfe_u32 v9, v2, 2, 1
        v_lshl_add_u32 v8, v9, 3, v8
        v_bfe_u32 v9, v2, 3, 1
        v_lshl_add_u32 v8, v9, 2, v8
        v_and_b32 v9, 15, v8
        v_xor_b32 v9, v9, v5
        v_lshlrev_b32 v8, 8, v8
        ''')
        for t in range(8):
            p('v_xor_b32 v10, %d, v9' % (2 * t))
            p('v_lshl_add_u32 v%d, v10, 4, v8' % (vKA + t))
        p('''
        v_lshlrev_b32 v8, 8, v3
        v_lshl_add_u32 v8, v1, 12, v8
        v_xor_b32 v9, v4, v3
        ''')
        for j in range(4):
            p('v_xor_b32 v10, %d, v9' % (4 * j))
            p('v_lshl_add_u32 v%d, v10, 4, v8' % (vDK + j))
        p('''
        v_lshlrev_b32 v10, 2, v3
        v_xor_b32 v10, v10, v4
        v_lshl_add_u32 v%d, v10, 4, v8
        s_lshl_b32 s%d, s%d, 19
        s_add_u32 s%d, s%d, %d
        s_lshl_b32 s46, s45, 4
        s_lshl_b32 s47, s%d, 2
        s_add_u32 s46, s46, s47
        s_lshl_b32 s46, s46, 7
        s_lshl_b32 s47, s%d, 2
        s_add_u32 s46, s46, s47
        s_lshl_b32 s46, s46, 10
        v_and_b32 v8, 1, v3
        v_lshlrev_b32 v8, 17, v8
        v_lshl_add_u32 v8, v5, 8, v8
        v_lshl_add_u32 v8, v4, 4, v8
        v_add_u32 v%d, s46, v8
        s_mov_b32 s35, 0x%x
        s_mov_b32 s36, 0x%x
        s_mov_b32 s44, %s
        ''' % (vDV, sKV, sHD, sKV, sKV, 1536 * 256, sW, sHD, vO, WS_O, WS_O + 0x40000, f32hex(SM_THR)))
        srd(p, 20, 52, 4096 * 1280)
        srd(p, 24, 54, 1728 * 1280)
        srd(p, 40, 48, 640 * 3456)
        srd(p, 48, 50, 640 * 3456)
        p('''
        v_bfe_u32 v8, v2, 4, 1
        v_lshl_add_u32 v8, v8, 2, v6
        v_lshl_add_u32 v8, v5, 4, v8
        v_mul_u32_u24 v8, 160, v8
        v_lshl_add_u32 v8, v7, 3, v8
        s_lshl_b32 s56, s%d, 13
        s_add_u32 s56, s56, 0x20000
        v_add_u32 v%d, s56, v8
        s_lshr_b32 s46, s2, 1
        s_and_b32 s47, s2, 1
        s_lshl_b32 s47, s47, 2
        s_add_u32 s47, s47, s%d
        s_mul_i32 s57, s46, 40960
        s_mul_i32 s3, s47, 160
        s_add_u32 s57, s57, s3
        s_lshl_b32 s3, s47, 7
        s_add_u32 s3, s3, s46
        s_mul_i32 s4, s3, 5120
        s_add_u32 s4, s4, 0x%x
        s_mul_i32 s3, s47, 54
        s_add_u32 s3, s3, s46
        s_mul_i32 s5, s3, 5120
        s_add_u32 s5, s5, 0x%x
        s_cmp_ge_u32 s46, 54
        s_cselect_b32 s3, 0x%x, 0
        s_add_u32 s5, s5, s3
        s_add_u32 s6, s4, 4096
        s_add_u32 s7, s5, 4096
        s_lshl_b32 s3, s2, 2
        s_add_u32 s3, s3, s%d
        s_mul_i32 s3, s3, 2176
        v_lshlrev_b32 v%d, 6, v2
        v_add_u32 v%d, s3, v%d
        s_lshl_b32 s37, s45, 7
        s_bfe_u32 s3, s2, 0x10002
        s_lshl_b32 s3, s3, 5
        s_lshr_b32 s28, s2, 3
        s_add_u32 s28, s28, s3
        s_lshl_b32 s28, s28, 2
        s_add_u32 s28, s28, s%d
        s_mul_i32 s28, s28, 20480
        s_add_u32 s28, s28, 0x%x
        v_lshlrev_b32 v%d, 6, v2
        ''' % (sW, vPT, sW, WS_WOP, WS_WDP, HUGE, sW, vPF, vPF, vPF, sW, WS_WOP, vPW))
        pack_voffsets(p, vPK, 2, vT)


    p('''
    s_load_dwordx4 s[4:7], s[0:1], %d
    s_load_dwordx4 s[8:11], s[0:1], %d
    s_load_dwordx4 s[52:55], s[0:1], %d
    s_load_dwordx4 s[48:51], s[0:1], %d
    v_lshrrev_b32 v1, 6, v0
    v_and_b32 v2, 63, v0
    v_readfirstlane_b32 s%d, v1
    s_and_b32 s3, s2, 7
    s_lshr_b32 s44, s2, 3
    s_and_b32 s40, s44, 3
    s_lshr_b32 s41, s44, 2
    s_lshl_b32 s41, s41, 3
    s_add_u32 s41, s41, s3
    s_lshl_b32 s42, s41, 2
    s_add_u32 s42, s42, s40
    s_lshl_b32 s40, s42, 5
    s_cmp_ge_u32 s41, 60
    s_cselect_b32 s43, 0x%x, 0
    s_and_b32 s45, s3, 1
    s_lshl_b32 s45, s45, 2
    s_and_b32 s46, s44, 3
    s_add_u32 s45, s45, s46
    s_lshr_b32 s3, s3, 1
    s_lshl_b32 s3, s3, 3
    s_lshr_b32 s44, s44, 2
    s_add_u32 s%d, s3, s44
    s_lshl_b32 s%d, s%d, 12
    s_lshl_b32 s%d, s%d, 8
    v_lshrrev_b32 v3, 1, v2
    v_mul_u32_u24 v4, 160, v1
    v_add_u32 v3, v3, v4
    v_lshlrev_b32 v5, 1, v3
    v_mul_u32_u24 v4, 7680, v3
    v_and_b32 v6, 1, v2
    v_lshlrev_b32 v6, 4, v6
    v_add3_u32 v4, v4, v6, s40
    v_add_u32 v4, s43, v4
    s_waitcnt lgkmcnt(0)
    ''' % (KA['x'], KA['v'], KA['dbg'], KA['c'], sW, HUGE, sHD, sM0, sW, sWQ, sHD))
    srd(p, 12, 48, 1280)
    srd(p, 16, 50, 640 * 7680)
    for m in range(5):
        p('buffer_load_ushort v%d, v5, s[12:15], 0 offen offset:%d' % (8 + m, 64 * m))
    for m in range(5):
        p('s_mov_b32 s38, %d' % (m * 32 * 7680))
        p('buffer_load_dwordx4 %s, v4, s[16:19], s38 offen' % vr(16 + 4 * m, 4))
    srd(p, SW, 54, WS_SIZE)
    srd(p, 12, 4, 2048 * 1280)
    srd(p, 20, 52, 256)
    p('''
    s_lshl_b32 s46, s2, 3
    v_lshrrev_b32 v3, 4, v2
    v_and_b32 v4, 15, v2
    v_lshl_add_u32 v56, v1, 2, v3
    v_add_u32 v56, s46, v56
    v_lshlrev_b32 v58, 4, v4
    v_mul_u32_u24 v59, 1280, v56
    v_add_u32 v59, v59, v58
    s_cmp_ge_u32 s%d, 2
    s_cselect_b32 s38, 0x%x, 0
    ''' % (sW, HUGE))
    XR, SA, C1, X = 60, 80, 100, 120
    for m in range(5):
        p('buffer_load_dwordx4 %s, v59, s[12:15], s38 offen offset:%d' % (vr(XR + 4 * m, 4), 256 * m))
    p('''
    s_load_dwordx4 s[48:51], s[0:1], %d
    s_load_dwordx2 s[52:53], s[0:1], %d
    s_load_dwordx2 s[54:55], s[0:1], %d
    ''' % (KA['wg'], KA['wo'], KA['wd']))
    srd(p, 16, 8, 32 * 2048 * 256)
    srd(p, 8, 10, 640 * 8192)
    srd(p, 12, 6, 32 * 2048 * 256)
    for m in range(5):
        c = 8 + m
        p('v_lshlrev_b32 v%d, 16, v%d' % (c, c))
        p('v_mul_f32 v40, %s, v%d' % (f32hex(-LOG2E), c))
        p('v_exp_f32 v40, v40')
        p('v_add_f32 v40, 1.0, v40')
        p('v_rcp_f32 v40, v40')
        p('v_mul_f32 v%d, v%d, v40' % (c, c))
        bf16_round(p, c, c)
    for m in range(5):
        for j in range(4):
            src = 16 + 4 * m + j
            p('v_lshlrev_b32 v40, 16, v%d' % src)
            p('v_and_b32 v41, 0xffff0000, v%d' % src)
            if m == 0:
                p('v_mul_f32 v%d, v40, v8' % (48 + 2 * j))
                p('v_mul_f32 v%d, v41, v8' % (49 + 2 * j))
            else:
                p('v_fmac_f32 v%d, v40, v%d' % (48 + 2 * j, 8 + m))
                p('v_fmac_f32 v%d, v41, v%d' % (49 + 2 * j, 8 + m))
    for mod in ('quad_perm:[2,3,0,1]', 'row_ror:4', 'row_ror:8'):
        for e in range(8):
            p('v_add_f32_dpp v%d, v%d, v%d %s row_mask:0xf bank_mask:0xf' % (48 + e, 48 + e, 48 + e, mod))
    MODL = 0x27000
    p('''
    v_lshrrev_b32 v7, 4, v0
    v_lshlrev_b32 v7, 6, v7
    v_lshl_add_u32 v7, v6, 1, v7
    v_add_u32 v7, %d, v7
    v_and_b32 v40, 14, v0
    v_cmp_eq_u32 vcc, 0, v40
    s_and_saveexec_b64 s[46:47], vcc
    ds_write_b128 v7, v[48:51]
    ds_write_b128 v7, v[52:55] offset:16
    s_mov_b64 exec, s[46:47]
    v_lshrrev_b32 v5, 5, v2
    v_bfe_u32 v6, v2, 2, 2
    v_and_b32 v7, 3, v2
    s_waitcnt lgkmcnt(0)
    s_barrier
    ''' % MODL)
    p.add(ST.st())
    p('''
    s_cmp_ge_u32 s%d, 2
    s_cbranch_scc1 L_roleB
    s_cmp_lg_u32 s%d, 0
    s_cbranch_scc1 L_ln
    v_and_b32 v40, 15, v0
    v_lshlrev_b32 v40, 2, v40
    v_add_u32 v42, %d, v40
    ''' % (sW, sW, MODL))
    for g in range(16):
        p('ds_read_b32 v%d, v42 offset:%d' % (16 + g, 64 * g))
    for g in range(1, 16):
        p('v_add_f32 v16, v16, v%d' % (16 + g))
    bf16_round(p, 16, 16)
    p('''
    v_lshrrev_b32 v41, 1, v40
    v_add_u32 v41, s40, v41
    s_lshl_b32 s40, s40, 1
    v_add_u32 v40, s40, v40
    v_add_u32 v40, s43, v40
    s_cmp_ge_u32 s41, 10
    s_cselect_b32 s38, 1.0, 0
    v_add_f32 v17, s38, v16
    v_cvt_pk_bf16_f32 v17, v17, v17
    s_lshl_b32 s39, s42, 7
    s_add_u32 s39, s39, %d
    s_cmp_lt_u32 s41, 20
    s_cselect_b32 s38, %d, 0x%x
    s_cselect_b32 s39, s39, 0x%x
    s_cselect_b32 s40, 0, 0x%x
    v_lshlrev_b32 v42, 2, v2
    v_mov_b32 v43, 0
    s_mov_b64 exec, 0xffff
    buffer_store_short v17, v41, %s, s38 offen sc1
    buffer_store_dword v16, v40, %s, 0 offen sc1
    s_mov_b32 exec_lo, -1
    buffer_store_dword v43, v42, %s, s39 offen sc1
    s_waitcnt vmcnt(0)
    s_mov_b64 exec, 1
    v_mov_b32 v41, 1
    v_mov_b32 v40, s40
    v_mov_b32 v42, 1
    buffer_atomic_add v41, v40, s[20:23], 0 offen sc0
    s_waitcnt vmcnt(0)
    v_cmp_eq_u32 vcc, 79, v41
    v_mov_b32 v43, 0x%x
    v_cndmask_b32 v40, v43, v40, vcc
    buffer_store_dword v42, v40, s[20:23], 0 offen offset:128 sc1
    s_mov_b64 exec, -1
    L_ln:
    s_waitcnt vmcnt(0)
    ''' % (WS_FLG, WS_MODB, HUGE, HUGE, HUGE, WSR, WSR, WSR, HUGE))
    for j in range(20):
        p('v_lshlrev_b32 v%d, 16, v%d' % (X + 2 * j, XR + j))
        p('v_and_b32 v%d, 0xffff0000, v%d' % (X + 2 * j + 1, XR + j))

    def row_sum(v):
        for mod in ('quad_perm:[1,0,3,2]', 'quad_perm:[2,3,0,1]', 'row_ror:4', 'row_ror:8'):
            p('v_add_f32_dpp v%d, v%d, v%d %s row_mask:0xf bank_mask:0xf' % (v, v, v, mod))

    p('v_add_f32 v10, v%d, v%d' % (X, X + 1))
    p('v_add_f32 v11, v%d, v%d' % (X + 2, X + 3))
    for e in range(4, 40):
        p('v_add_f32 v%d, v%d, v%d' % (10 + e % 2, 10 + e % 2, X + e))
    p('v_add_f32 v10, v10, v11')
    row_sum(10)
    p('v_mul_f32 v10, %s, v10' % f32hex(1.0 / 640))
    for e in range(40):
        p('v_sub_f32 v%d, v%d, v10' % (14 + e % 2, X + e))
        if e < 2:
            p('v_mul_f32 v%d, v%d, v%d' % (12 + e % 2, 14 + e % 2, 14 + e % 2))
        else:
            p('v_fmac_f32 v%d, v%d, v%d' % (12 + e % 2, 14 + e % 2, 14 + e % 2))
    p('v_add_f32 v13, v12, v13')
    row_sum(13)
    p('v_mul_f32 v13, %s, v13' % f32hex(1.0 / 640))
    bf16_round(p, 10, 10)
    bf16_round(p, 13, 13)
    p('v_add_f32 v13, %s, v13' % f32hex(1e-5))
    bf16_round(p, 13, 13)
    p('v_sqrt_f32 v13, v13')
    bf16_round(p, 13, 13)
    p('v_rcp_f32 v13, v13')
    p('''
    v_lshrrev_b32 v11, 5, v56
    v_mul_u32_u24 v11, 40960, v11
    v_lshl_add_u32 v11, v4, 9, v11
    v_and_b32 v12, 31, v56
    v_lshl_add_u32 v11, v12, 4, v11
    ''')
    for j in range(20):
        a, b = X + 2 * j, X + 2 * j + 1
        p('v_sub_f32 v%d, v%d, v10' % (a, a))
        p('v_sub_f32 v%d, v%d, v10' % (b, b))
        p('v_cvt_pk_bf16_f32 v14, v%d, v%d' % (a, b))
        p('v_lshlrev_b32 v%d, 16, v14' % a)
        p('v_and_b32 v%d, 0xffff0000, v14' % b)
        p('v_mul_f32 v%d, v%d, v13' % (a, a))
        p('v_mul_f32 v%d, v%d, v13' % (b, b))
        p('v_cvt_pk_bf16_f32 v14, v%d, v%d' % (a, b))
        p('v_lshlrev_b32 v%d, 16, v14' % a)
        p('v_and_b32 v%d, 0xffff0000, v14' % b)
    p('''
    v_mov_b32 v14, 0
    s_mov_b32 s101, 0
    L_pollm:
    buffer_load_dword v15, v14, s[20:23], 0 offen offset:128 sc1
    s_add_u32 s101, s101, 1
    s_waitcnt vmcnt(0)
    v_cmp_eq_u32 vcc, 0, v15
    s_cbranch_vccz L_pollm_go
    s_sleep 2
    s_cmp_lt_u32 s101, 0x20000
    s_cbranch_scc1 L_pollm
    L_pollm_go:
    s_mov_b32 s34, %d
    ''' % WS_MODB)
    p.reset()
    for m in range(5):
        p('buffer_load_dwordx4 %s, v58, %s, s34 offen offset:%d sc1' % (vr(C1 + 4 * m, 4), WSR, 1280 + 256 * m))
        p('buffer_load_dwordx4 %s, v58, %s, s34 offen offset:%d sc1' % (vr(SA + 4 * m, 4), WSR, 256 * m))
    for m in range(5):
        for j in range(4):
            a, b = X + 8 * m + 2 * j, X + 8 * m + 2 * j + 1
            p('v_lshlrev_b32 v14, 16, v%d' % (C1 + 4 * m + j))
            p('v_and_b32 v15, 0xffff0000, v%d' % (C1 + 4 * m + j))
            p('v_mul_f32 v%d, v%d, v14' % (a, a))
            p('v_mul_f32 v%d, v%d, v15' % (b, b))
            p('v_cvt_pk_bf16_f32 v14, v%d, v%d' % (a, b))
            p('v_lshlrev_b32 v%d, 16, v14' % a)
            p('v_and_b32 v%d, 0xffff0000, v14' % b)
            p('v_lshlrev_b32 v14, 16, v%d' % (SA + 4 * m + j))
            p('v_and_b32 v15, 0xffff0000, v%d' % (SA + 4 * m + j))
            p('v_add_f32 v%d, v%d, v14' % (a, a))
            p('v_add_f32 v%d, v%d, v15' % (b, b))
            p('v_cvt_pk_bf16_f32 v%d, v%d, v%d' % (XR + 4 * m + j, a, b))
        p('s_mov_b32 s34, %d' % (WS_H + 8192 * m))
        p('buffer_store_dwordx4 %s, v11, %s, s34 offen sc1' % (vr(XR + 4 * m, 4), WSR))
    p('s_lshr_b32 s46, s2, 5')
    p('s_lshl_b32 s46, s46, 7')
    signal(p, F_H, 46, 32, 24)
    p.reset()
    p('s_waitcnt lgkmcnt(0)')
    setup(p)
    wait_word(p, WS_FLG + (F_H + 8) * 128, 's37', 1, 24)
    p('s_branch L_join')
    p('L_roleB:')
    p.reset()
    p('''
    s_sub_u32 s46, s%d, 2
    s_lshl_b32 s39, s46, 13
    s_lshl_b32 s46, s46, 5
    v_lshlrev_b32 v8, 2, v3
    v_xor_b32 v8, v8, v4
    v_lshlrev_b32 v8, 4, v8
    v_add_u32 v9, s46, v3
    v_lshl_add_u32 v%d, v9, 13, v8
    ''' % (sW, vDW))
    for j in range(1, 4):
        p('v_add_u32 v%d, %d, v%d' % (vDW + j, j * (32768 - 1024), vDW))

    def dma_wq(c):
        for hh in range(2):
            p('s_add_u32 m0, s39, %d' % (c * 16384 + 4096 * hh))
            p('s_add_u32 s%d, s%d, %d' % (sT, sWQ, (c * 64 + 16 * hh) * 8192))
            for j in range(4):
                p('buffer_load_dwordx4 v%d, s[8:11], s%d offen offset:%d lds' % (vDW + j, sT, 1024 * j))

    for c in range(9):
        dma_wq(c)
    p('''
    s_getpc_b64 s[24:25]
    L_pc0:
    s_add_u32 s24, s24, L_join-L_pc0
    s_addc_u32 s25, s25, 0
    s_mov_b32 s26, L_code_end-L_join
    s_mov_b32 s27, 0x20000
    s_lshr_b32 s46, s2, 3
    s_lshl_b32 s46, s46, 12
    v_and_b32 v8, 1, v1
    v_lshlrev_b32 v8, 11, v8
    v_lshl_add_u32 v8, v2, 5, v8
    v_and_b32 v8, 0xfc0, v8
    buffer_load_dword v252, v8, s[24:27], s46 offen
    s_waitcnt lgkmcnt(0)
    ''')
    setup(p)
    p('s_barrier')
    dma_wq(9)
    p('s_waitcnt vmcnt(0)')
    p('L_join:')
    p.reset()
    p.add(ST.st())

    def pack_dma(which):
        srdb = 20 if which == 'wo' else 24
        L = [I('s_mov_b32 m0, s56')]
        for m in range(5):
            if m == 4:
                L.append(I('s_add_u32 m0, s56, 4096'))
            L.append(I('buffer_load_dwordx4 v%d, s[%d:%d], s57 offen offset:%d lds' % (vPK + m, srdb, srdb + 3, 1024 * (m % 4)), tag='p' + which))
        return L

    def pack_rd(which):
        L = [WVM('p' + which)]
        for j in range(5):
            for a in range(2):
                L.append(I('ds_read_b64_tr_b16 %s, v%d offset:%d' % (ar(PKF(j) + 2 * a, 2), vPT, a * 1280 + 32 * j)))
        return L

    def pack_st(which):
        so = 4 if which == 'wo' else 5
        return [I('buffer_store_dwordx4 %s, v%d, %s, s%d offen offset:%d sc1' % (
            ar(PKF(j), 4), vPS, WSR, so + (2 if j == 4 else 0), 1024 * (j % 4)), tag='ps' + which) for j in range(5)]

    def rd_w(c, ks):
        L = []
        g, so = c // 4, (c % 4) * 16384
        for dt in range(4):
            for a in range(2):
                L.append(I('ds_read_b64_tr_b16 %s, v%d offset:%d' % (ar(AW(ks, dt) + 2 * a, 2), vTR + 4 * g + dt, so + (16 * ks + 4 * a) * 256)))
        return L

    def mf_q(c, ks, qts=(0, 1)):
        L = []
        kk = c * 4 + ks
        for dt in range(4):
            for qt in qts:
                src = vr(QA(qt, dt), 16) if kk > 0 else '0'
                L.append(I('%s %s, %s, %s, %s' % (MF, vr(QA(qt, dt), 16), ar(AW(ks, dt), 4), ar(HF(kk * 2 + qt), 4), src)))
        return L

    def rd_k(s, t):
        c = s // 2
        return I('ds_read_b128 %s, v%d offset:%d' % (ar(KFR(t), 4), vKA + t, (c % 4) * 16384 + (s % 2) * 8192))

    def rd_v(s, dt, kk):
        c = s // 2
        return [I('ds_read_b64_tr_b16 %s, v%d offset:%d' % (ar(VFR(dt, kk) + 2 * a, 2), vTR + 4 + dt,
                                                            (c % 4) * 16384 + (s % 2) * 8192 + (16 * kk + 4 * a) * 256)) for a in range(2)]

    qscale = f32hex(128 ** -0.5 * LOG2E)

    def cvt_q(qt):
        L = []
        for dt in range(4):
            for t2 in range(2):
                b = QA(qt, dt) + 8 * t2
                for e in range(8):
                    L.append(I('v_mul_f32 v%d, %s, v%d' % (b + e, qscale, b + e)))
                for j in range(4):
                    L.append(I('v_cvt_pk_bf16_f32 v%d, v%d, v%d' % (QF(qt, 2 * dt + t2) + j, b + 2 * j, b + 2 * j + 1)))
        return L

    NPRE = 3
    p('s_barrier')
    for c in range(NPRE):
        p.add(ld_h(c))
    p.add(rd_w(0, 0))
    p.add(rd_w(0, 1))
    sc = Sched()
    kvq = {}
    for c in range(NPRE, 10):
        sc.queue(ld_h(c), max(0, 32 * (c - 5)))
        if c == 7:
            sc.queue(dma_k(0) + dma_k(1), 32 * 2 + 16)
        if c == 9:
            sc.queue(dma_k(2) + dma_k(3), 32 * 4 + 16)
    sc.queue(dma_v(0) + dma_v(1), 32 * 6 + 16)
    sc.queue(dma_v(2) + dma_v(3), 32 * 8 + 16)
    for c in range(10):
        if c < 9:
            g = sc.mf(mf_q(c, 0) + mf_q(c, 1) + mf_q(c, 2) + mf_q(c, 3))
            sc.place(rd_w(c, 2), g, g + 8)
            sc.place(rd_w(c, 3), g + 8, g + 16)
            if c % 2 == 0 and c >= 2:
                sc.place([I('s_barrier')], g + 15, g + 16)
            sc.place(rd_w(c + 1, 0), g + 16, g + 24)
            sc.place(rd_w(c + 1, 1), g + 24, g + 32)
        else:
            g = sc.mf(mf_q(c, 0, (0,)) + mf_q(c, 1, (0,)) + mf_q(c, 2, (0,)) + mf_q(c, 3, (0,)))
            sc.place(rd_w(c, 2), g, g + 4)
            sc.place(rd_w(c, 3), g + 4, g + 8)
            sc.place([WVM('k0'), WVM('v0'), I('s_barrier')], g + 10, g + 11)
            g = sc.mf(mf_q(c, 0, (1,)) + mf_q(c, 1, (1,)) + mf_q(c, 2, (1,)) + mf_q(c, 3, (1,)))
            sc.place(cvt_q(0), g + 1, g + 16)
            sc.place([rd_k(0, t) for t in range(8)], g, g + 16)
            if PROF:
                sc.place(ST.st(), g + 15, g + 16)

    def mf_qk(h):
        s, qt = h // 2, h % 2
        L = []
        for t in range(8):
            src = vr(S(qt), 16) if t > 0 else ('0' if s == 0 else vr(NM(qt), 16))
            L.append(I('%s %s, %s, %s, %s' % (MF, vr(S(qt), 16), ar(KFR(t), 4), vr(QF(qt, t), 4), src)))
        return L

    def mf_pv(h):
        s, qt = h // 2, h % 2
        L = []
        for dt in range(4):
            for kk in range(2):
                src = ar(OA(qt, dt), 16) if (s > 0 or kk > 0) else '0'
                L.append(I('%s %s, %s, %s, %s' % (MF, ar(OA(qt, dt), 16), ar(VFR(dt, kk), 4), vr(P(qt, kk), 4), src)))
        return L

    def sm(h, sub=False):
        s, qt = h // 2, h % 2
        b = S(qt)
        ls = vLS + qt
        T = lambda e: vT + (e % 8)
        G = []
        for e in range(18):
            g = []
            if e < 16:
                if sub:
                    g.append(I('v_add_f32 v%d, v%d, v%d' % (b + e, b + e, NM(qt))))
                g.append(I('v_exp_f32 v%d, v%d' % (T(e), b + e)))
            d = e - 2
            if d == 1:
                g.append(I('v_add_f32 v%d, v%d, v%d' % (ls, T(0), T(1))))
            elif d >= 2:
                g.append(I('v_add_f32 v%d, v%d, v%d' % (ls, ls, T(d))))
            if d >= 1 and d % 2 == 1:
                g.append(I('v_cvt_pk_bf16_f32 v%d, v%d, v%d' % (P(qt, d // 8) + (d % 8) // 2, T(d - 1), T(d))))
            G.append(g)
        G[15] = G[15] + G[16] + G[17]
        return G[:16]

    def rowmax(qt, dst, tmp):
        b = S(qt)
        L = [I('v_max3_f32 v%d, v%d, v%d, v%d' % (dst, b, b + 1, b + 2))]
        for e in range(3, 15, 2):
            L.append(I('v_max3_f32 v%d, v%d, v%d, v%d' % (dst, dst, b + e, b + e + 1)))
        L.append(I('v_max_f32 v%d, v%d, v%d' % (dst, dst, b + 15)))
        L.append(I('v_mov_b32 v%d, v%d' % (tmp, dst)))
        L.append(I('v_permlane32_swap_b32 v%d, v%d' % (tmp, dst)))
        L.append(I('v_max_f32 v%d, v%d, v%d' % (dst, dst, tmp)))
        return L

    def first_max(qt):
        L = rowmax(qt, vT + 8, vT + 9)
        for e in range(16):
            L.append(I('v_sub_f32 v%d, 0, v%d' % (NM(qt) + e, vT + 8)))
        return L

    def check(h):
        qt = h % 2
        L = []
        if h >= 2:
            L.append(I('v_cmp_nge_f32 vcc, s44, v%d' % (vLS + qt)))
            L.append([I('s_cbranch_vccnz L_slow_%d' % h), I('L_back_%d:' % h)])
            L.append(I('v_add_f32 v%d, v%d, v%d' % (vLT + qt, vLT + qt, vLS + qt)))
        else:
            L.append(I('v_mov_b32 v%d, v%d' % (vLT + qt, vLS + qt)))
        return L

    def finalize_q(qt):
        L = [I('v_mov_b32 v%d, v%d' % (vT + 8, vLT + qt)),
             I('v_permlane32_swap_b32 v%d, v%d' % (vT + 8, vLT + qt)),
             I('v_add_f32 v%d, v%d, v%d' % (vT + 8, vT + 8, vLT + qt)),
             I('v_rcp_f32 v%d, v%d' % (vT + 8, vT + 8))]
        n = 0
        for dt in range(4):
            for t2 in range(2):
                tb = 176 + 12 * (n % 2)
                n += 1
                for e in range(8):
                    L.append(I('v_accvgpr_read_b32 v%d, a%d' % (tb + e, OA(qt, dt) + 8 * t2 + e)))
                for e in range(8):
                    L.append(I('v_mul_f32 v%d, v%d, v%d' % (tb + e, tb + e, vT + 8)))
                for j in range(4):
                    L.append(I('v_cvt_pk_bf16_f32 v%d, v%d, v%d' % (tb + 8 + j, tb + 2 * j, tb + 2 * j + 1)))
                L.append(I('buffer_store_dwordx4 %s, v%d, %s, s%d offen offset:%d sc1' % (
                    vr(tb + 8, 4), vO, WSR, 36 if qt else 35, dt * 1024 + t2 * 512)))
        return L

    g = sc.mf(mf_qk(0))
    sc.place(cvt_q(1), g, g + 8)
    for n in range(0, 33):
        M = []
        if n + 1 < 32:
            M += mf_qk(n + 1)
        if n - 1 >= 0:
            M += mf_pv(n - 1)
        tot = len(M)
        g = sc.mf(M)
        if 2 <= n < 31:
            V = sm(n)
            V[15] = V[15] + check(n)
        elif n < 32:
            V = []
            if n < 2:
                V += first_max(n)
            for grp in sm(n, sub=(n < 2)):
                V += grp
            V += check(n)
        else:
            V = finalize_q(0)
        if n % 2 == 0:
            s = n // 2 + 1
            if s < 16 and s % 2 == 0:
                c = s // 2
                W = [WVM('k%d' % c), WVM('v%d' % c)]
                if c == 7:
                    W.append(WVM('pswd'))
                sc.place(W + [I('s_barrier')], g, g + 1)
                if c == 7:
                    sc.place(count_only(F_PK, 128), g + 1, g + 2)
                if c + 3 < 8:
                    sc.queue(dma_k(c + 3), g + 1)
                if c >= 2 and c + 2 < 8:
                    sc.queue(dma_v(c + 2), g + 1)
        sc.place(V, g + (1 if n == 0 else 0), g + tot)
        if n % 2 == 0 and n // 2 + 1 < 16:
            sc.place([rd_k(n // 2 + 1, t) for t in range(8)], g + 1, g + min(9, tot))
        RV = lambda s, a: [rd_v(s, dt, kk)[a] for dt in range(4) for kk in range(2)]
        if n == 1:
            sc.place(RV(0, 0) + RV(0, 1), g, g + 8)
        elif n == 30:
            sc.place([x for pr in zip(RV(15, 0), RV(15, 1)) for x in pr], g + 8, g + 16)
        elif n % 2 == 0 and 2 <= n < 30:
            sc.place(RV(n // 2, 0), g + 8, g + 16)
        elif n % 2 == 1 and 3 <= n < 31:
            sc.place(RV(n // 2, 1), g, g + 8)
        if n == 3:
            sc.queue(pack_dma('wo'), g)
        if n == 11:
            sc.place(pack_rd('wo'), g + 8, g + 16)
        if n == 13:
            sc.queue(pack_st('wo'), g + 8)
        if n == 15:
            sc.queue(pack_dma('wd'), g)
        if n == 19:
            sc.queue([I('buffer_load_dword v%d, v%d, s[40:43], 0 offen' % (138, vPF)),
                      I('buffer_load_dword v%d, v%d, s[48:51], 0 offen' % (139, vPF))], g)
        if n == 25:
            L = []
            for m in range(5):
                L.append(I('s_add_u32 s%d, s28, %d' % (sT, m * 4096)))
                L.append(I('buffer_load_dword v%d, v%d, %s, s%d offen sc1' % (132 + m, vPW, WSR, sT)))
            sc.queue(L, g)
        if n == 21:
            sc.place(pack_rd('wd'), g + 8, g + 16)
        if n == 23:
            sc.queue(pack_st('wd'), g)
    sc.emit(p)
    p.add(ST.st())
    p.add(finalize_q(1))
    signal(p, F_O, 37, 32, 24)
    p.reset()

    def tail(p):
        for h in range(2, 32):
            p('L_slow_%d:' % h)
            p('s_call_b64 s[46:47], L_rescale_%d' % (h % 2))
            p('s_branch L_back_%d' % h)
        for qt in range(2):
            p('L_rescale_%d:' % qt)
            p('s_nop 15')
            p('s_nop 15')
            d, f = vT + 8, vT + 9
            p.add(rowmax(qt, d, f))
            p('v_max_f32 v%d, 0, v%d' % (d, d))
            p('v_sub_f32 v%d, 0, v%d' % (f, d))
            p('v_exp_f32 v%d, v%d' % (f, f))
            for e in range(16):
                p('v_sub_f32 v%d, v%d, v%d' % (S(qt) + e, S(qt) + e, d))
                p('v_sub_f32 v%d, v%d, v%d' % (NM(qt) + e, NM(qt) + e, d))
            p('v_mul_f32 v%d, v%d, v%d' % (vLT + qt, vLT + qt, f))
            for r in range(64):
                a = OA(qt, 0) + r
                p('v_accvgpr_read_b32 v%d, a%d' % (vT + 10, a))
                p('v_mul_f32 v%d, v%d, v%d' % (vT + 10, vT + 10, f))
                p('v_accvgpr_write_b32 a%d, v%d' % (a, vT + 10))
            p.add(sm(qt + 2))
            p('s_nop 3')
            p('s_setpc_b64 s[46:47]')
    return tail


def phase_gemm(p, ST, final):
    MF = MF16
    nkb, steps = (54, 14) if final else (128, 32)
    w_off, b_off = (WS_WDP, WS_ACT) if final else (WS_WOP, WS_O)
    D = 6
    NR = D + 1
    NA = 8
    NL = 6 if final else 8
    ACC = lambda qt, j: (qt * 5 + j) * 4
    BF = lambda i, qt: 64 + ((i % NR) * 4 + qt) * 4
    AR = lambda i, j: 80 + ((i % NA) * 5 + j) * 4
    AL = lambda i, j: (36 if i % 2 == 0 else 236) + 4 * j
    inlds = lambda i: NA <= i < NA + NL
    vA, vA4, vB, vL = 20, 21, 22, 19
    sW, sKB = sWV, 30
    p('''
    s_load_dwordx2 s[40:41], s[0:1], %d
    s_load_dwordx4 s[44:47], s[0:1], %d
    v_lshrrev_b32 v1, 6, v0
    v_and_b32 v2, 63, v0
    s_and_b32 s3, s2, 7
    s_lshr_b32 s4, s2, 3
    s_and_b32 s5, s3, 3
    s_lshl_b32 s5, s5, 3
    s_lshr_b32 s6, s4, 2
    s_add_u32 s5, s5, s6
    s_lshr_b32 s3, s3, 2
    s_lshl_b32 s3, s3, 2
    s_and_b32 s4, s4, 3
    s_add_u32 s6, s3, s4
    s_mul_i32 s%d, s%d, %d
    s_lshr_b32 s37, s5, 2
    s_lshl_b32 s37, s37, 7
    ''' % (KA['out'] if final else KA['x'], KA['wg'], sKB, sW, steps))
    ragged = steps * 4 != nkb
    if ragged:
        p('s_cmp_eq_u32 s%d, 3' % sW)
        p('s_cselect_b32 s7, 1, 0')
        p('s_sub_u32 s%d, s%d, s7' % (sKB, sKB))
        p('s_cmp_ge_u32 s%d, 2' % sW)
        p('s_cselect_b32 s52, 0x%x, 0' % HUGE)
    p('''
    s_mul_i32 s7, s6, %d
    s_add_u32 s7, s7, s%d
    s_mul_i32 s7, s7, 5120
    v_lshlrev_b32 v3, 4, v2
    v_add_u32 v%d, s7, v3
    v_add_u32 v%d, 4096, v%d
    s_mul_i32 s7, s5, %d
    s_add_u32 s7, s7, s%d
    s_lshl_b32 s7, s7, 10
    v_add_u32 v%d, s7, v3
    s_mul_i32 s29, s%d, 40960
    v_add_u32 v%d, s29, v3
    ''' % (nkb, sKB, vA, vA4, vA, 4 * nkb, sKB, vB, sW, vL))
    for qt in range(4):
        p('s_mov_b32 s%d, 0x%x' % (48 + qt, b_off + qt * nkb * 1024))
    p('''
    v_mov_b32 v63, 0
    v_lshrrev_b32 v23, 2, v0
    s_lshl_b32 s7, s5, 6
    v_add_u32 v27, s7, v23
    v_and_b32 v28, 3, v0
    v_mul_u32_u24 v24, 1280, v27
    v_lshl_add_u32 v24, v28, 4, v24
    s_mul_i32 s7, s6, 160
    v_add_u32 v24, s7, v24
    s_mul_i32 s7, s6, 10
    v_add_u32 v29, s7, v28
    v_lshrrev_b32 v25, 5, v27
    v_mul_u32_u24 v25, 40960, v25
    v_lshl_add_u32 v25, v29, 9, v25
    v_and_b32 v30, 31, v27
    v_lshl_add_u32 v25, v30, 4, v25
    v_lshlrev_b32 v26, 5, v29
    v_cmp_gt_u32 vcc, 2, v28
    v_mov_b32 v31, 0x%x
    v_cndmask_b32 v31, v31, v63, vcc
    v_add_u32 v32, v24, v31
    v_add_u32 v33, v25, v31
    v_add_u32 v34, v26, v31
    s_mov_b32 s53, 0x%x
    s_mov_b32 s54, %d
    s_mov_b32 s55, %d
    s_mov_b32 s42, 0x%x
    s_mov_b32 s43, 0x%x
    s_mov_b32 s38, 0x%x
    s_waitcnt lgkmcnt(0)
    ''' % (HUGE, WS_X1 + 4096, WS_MOD + (5 if final else 2) * 2560, WS_MOD + 4 * 2560, WS_X1, WS_Z, WS_Z + 4096))
    srd(p, 24, 40, 2048 * 1280)
    if PUREH:
        p.add(ST.st())
        wait_word(p, WS_FLG + ((F_A if final else F_O) + 8) * 128, 's37', 1, 56)
        p.add(ST.st())
    RES, GATE, CB = 176, 188, 212

    def ld_a(i):
        lastr = ragged and i == steps - 1
        L = [I('s_mov_b32 s32, 0x%x' % (w_off + i * 5120))]
        if lastr:
            L.append(I('s_add_u32 s32, s32, s52'))
        for j in range(5):
            if inlds(i):
                if j % 4 == 0:
                    L.append(I('s_add_u32 m0, s29, %d' % ((i - NA) * 5120 + 1024 * j)))
                L.append(I('buffer_load_dwordx4 v%d, %s, s32 offen offset:%d sc1 lds' % (vA4 if j == 4 else vA, WSR, 1024 * (j % 4))))
            else:
                L.append(I('buffer_load_dwordx4 %s, v%d, %s, s32 offen offset:%d sc1' % (ar(AR(i, j), 4), vA4 if j == 4 else vA, WSR, 1024 * (j % 4))))
        return L

    def rd_a(i):
        return [I('ds_read_b128 %s, v%d offset:%d' % (vr(AL(i, j), 4), vL, (i - NA) * 5120 + 1024 * j)) for j in range(5)]

    def ld_b(i):
        L = []
        lastr = ragged and i == steps - 1
        if i % 4 == 0 and i > 0:
            L.append(I('v_add_u32 v%d, 4096, v%d' % (vB, vB)))
        if lastr:
            L.append(I('v_add_u32 v%d, s52, v%d' % (vB, vB)))
        for j in range(4):
            L.append(I('buffer_load_dwordx4 %s, v%d, %s, s%d offen offset:%d sc1' % (vr(BF(i, j), 4), vB, WSR, 48 + j, 1024 * (i % 4))))
        return L

    def epi_fetch():
        L = []
        for rnd in range(3):
            a24, a25, a26 = (24, 25, 26) if rnd < 2 else (32, 33, 34)
            if final:
                L.append(I('buffer_load_dwordx4 %s, v%d, %s, s%d offen offset:%d sc1' % (vr(RES + 4 * rnd, 4), a25, WSR, 42 if rnd < 2 else 53, 2048 * (rnd % 2))))
            else:
                L.append(I('buffer_load_dwordx4 %s, v%d, s[24:27], 0 offen offset:%d' % (vr(RES + 4 * rnd, 4), a24, 64 * rnd)))
            for hh in range(2):
                L.append(I('buffer_load_dwordx4 %s, v%d, %s, s54 offen offset:%d sc1' % (vr(GATE + 8 * rnd + 4 * hh, 4), a26, WSR, 128 * rnd + 16 * hh)))
                if not final:
                    L.append(I('buffer_load_dwordx4 %s, v%d, %s, s55 offen offset:%d sc1' % (vr(CB + 8 * rnd + 4 * hh, 4), a26, WSR, 128 * rnd + 16 * hh)))
        return L

    if not final:
        UW, UC, UA = 36, 4, 236
        p('''
        s_mul_i32 s56, s2, 1214
        s_lshr_b32 s56, s56, 16
        s_mul_i32 s57, s56, 54
        s_sub_u32 s57, s2, s57
        s_cmp_ge_u32 s57, 27
        s_cselect_b32 s8, s46, s44
        s_cselect_b32 s9, s47, s45
        s_cselect_b32 s3, 27, 0
        s_mov_b32 s10, 0x%x
        s_mov_b32 s11, 0x20000
        s_sub_u32 s3, s57, s3
        s_lshl_b32 s3, s3, 7
        s_mul_i32 s4, s56, 160
        s_mul_i32 s7, s%d, 40
        s_add_u32 s4, s4, s7
        v_lshrrev_b32 v14, 3, v2
        v_add_u32 v14, s4, v14
        v_mul_u32_u24 v15, 3456, v14
        v_and_b32 v16, 7, v2
        v_lshl_add_u32 v15, v16, 4, v15
        v_add_u32 v15, s3, v15
        v_lshlrev_b32 v14, 2, v14
        s_mov_b32 s4, %d
        ''' % (640 * 3456, sW, WS_MOD + 3 * 2560))
        wait_word(p, WS_FLG + F_PK * 128, '0', 256, 56)
        for m in range(5):
            p('s_mov_b32 s33, %d' % (m * 8 * 3456))
            p('buffer_load_dwordx4 %s, v15, s[8:11], s33 offen' % vr(UW + 4 * m, 4))
            p('buffer_load_dword v%d, v14, %s, s55 offen offset:%d sc1' % (UC + m, WSR, 32 * m))
            p('buffer_load_dword v%d, v14, %s, s4 offen offset:%d sc1' % (UC + 5 + m, WSR, 32 * m))
    for i in range(NA + NL):
        p.add(ld_a(i))
    p.add(epi_fetch())
    if not final:
        for m in range(5):
            p('v_add_f32 v%d, 1.0, v%d' % (UC + m, UC + m))
            bf16_round(p, UC + m, UC + m)
            for j in range(4):
                p('v_lshlrev_b32 v17, 16, v%d' % (UW + 4 * m + j))
                p('v_and_b32 v18, 0xffff0000, v%d' % (UW + 4 * m + j))
                for wh in range(2):
                    cc = UC + 5 * wh + m
                    for hi in range(2):
                        acc = UA + 8 * wh + 2 * j + hi
                        if m == 0:
                            p('v_mul_f32 v%d, v%d, v%d' % (acc, 17 + hi, cc))
                        else:
                            p('v_fmac_f32 v%d, v%d, v%d' % (acc, 17 + hi, cc))
        for e in range(16):
            p('v_add_f32_dpp v%d, v%d, v%d row_ror:8 row_mask:0xf bank_mask:0xf' % (UA + e, UA + e, UA + e))
        for swp in ('v_permlane16_swap_b32', 'v_permlane32_swap_b32'):
            for e in range(16):
                p('v_mov_b32 v%d, v%d' % (UW + e, UA + e))
            for e in range(16):
                p('%s v%d, v%d' % (swp, UW + e, UA + e))
            for e in range(16):
                p('v_add_f32 v%d, v%d, v%d' % (UA + e, UA + e, UW + e))
        p('''
        s_lshl_b32 s7, s56, 2
        s_add_u32 s7, s7, s%d
        s_mul_i32 s7, s7, %d
        s_lshl_b32 s3, s57, 8
        s_add_u32 s7, s7, s3
        s_add_u32 s7, s7, 0x%x
        s_cmp_ge_u32 s56, 4
        s_cselect_b32 s7, 0x%x, s7
        s_add_u32 s3, s7, %d
        v_lshlrev_b32 v4, 5, v16
        s_mov_b64 exec, 0xff
        buffer_store_dwordx4 %s, v4, %s, s7 offen sc1
        buffer_store_dwordx4 %s, v4, %s, s7 offen offset:16 sc1
        buffer_store_dwordx4 %s, v4, %s, s3 offen sc1
        buffer_store_dwordx4 %s, v4, %s, s3 offen offset:16 sc1
        s_mov_b64 exec, -1
        ''' % (sW, 2 * 3456 * 4, WS_UP, HUGE, 3456 * 4, vr(UA, 4), WSR, vr(UA + 4, 4), WSR, vr(UA + 8, 4), WSR, vr(UA + 12, 4), WSR))
    if not PUREH:
        p.add(ST.st())
    wait_word(p, WS_FLG + ((F_A if final else F_O) + 8) * 128, 's37', 1, 56)
    if not PUREH:
        p.add(ST.st())
    for i in range(min(D, steps)):
        p.add(ld_b(i))
    if not final:
        p('s_barrier')
        p.add(count_only(F_U, 56))
    sc = Sched()
    for i in range(steps):
        M = []
        for j in range(5):
            for qt in range(4):
                src = ar(ACC(qt, j), 4) if i > 0 else '0'
                a = vr(AL(i, j), 4) if inlds(i) else ar(AR(i, j), 4)
                M.append(I('%s %s, %s, %s, %s' % (MF, ar(ACC(qt, j), 4), a, vr(BF(i, qt), 4), src)))
        g = sc.mf(M)
        L = []
        if i + D < steps:
            L += ld_b(i + D)
        ia = i - 1 + (NA + NL if i - 1 < NA else NA)
        if i >= 1 and ia < steps and not inlds(i - 1):
            L += ld_a(ia)
        if L:
            sc.place(L, g, g + 20)
        if inlds(i + 1):
            sc.place(rd_a(i + 1), g + 4, g + 16)
    sc.emit(p)
    p.add(ST.st())
    p('s_barrier')
    p('''
    v_and_b32 v3, 15, v2
    v_mul_u32_u24 v3, 336, v3
    v_lshrrev_b32 v4, 4, v2
    v_lshl_add_u32 v3, v4, 4, v3
    s_mul_i32 s7, s%d, 21504
    v_add_u32 v3, s7, v3
    ''' % sW)
    for qt in range(4):
        for j in range(5):
            p('ds_write_b128 v3, %s offset:%d' % (ar(ACC(qt, j), 4), qt * 16 * 336 + 64 * j))
    p.wait_lgkm0()
    p('s_barrier')
    p('''
    v_mul_u32_u24 v3, 336, v23
    v_lshl_add_u32 v3, v28, 5, v3
    v_add_u32 v4, 43008, v3
    ''')
    X = 64
    TMP = 96
    for rnd in range(3):
        for w in range(4):
            for hh in range(2):
                dst = X + 8 * rnd + 4 * hh if w == 0 else TMP + ((rnd * 3 + w - 1) * 2 + hh) * 4
                p('ds_read_b128 %s, v%d offset:%d' % (vr(dst, 4), 3 if w < 2 else 4, (w % 2) * 21504 + 128 * rnd + 16 * hh))
    for rnd in range(3):
        for w in range(1, 4):
            for e in range(8):
                p('v_add_f32 v%d, v%d, v%d' % (X + 8 * rnd + e, X + 8 * rnd + e, TMP + (rnd * 3 + w - 1) * 8 + e))
        for e in range(8):
            x = X + 8 * rnd + e
            if e % 2 == 0:
                p('v_lshlrev_b32 v5, 16, v%d' % (RES + 4 * rnd + e // 2))
            else:
                p('v_and_b32 v5, 0xffff0000, v%d' % (RES + 4 * rnd + e // 2))
            p('v_fma_f32 v%d, v%d, v%d, v5' % (x, x, GATE + 8 * rnd + e))
        for j in range(4):
            p('v_cvt_pk_bf16_f32 v%d, v%d, v%d' % (36 + 4 * rnd + j, X + 8 * rnd + 2 * j, X + 8 * rnd + 2 * j + 1))
        if final:
            p('buffer_store_dwordx4 %s, v%d, s[24:27], 0 offen offset:%d' % (vr(36 + 4 * rnd, 4), 24 if rnd < 2 else 32, 64 * rnd))
        else:
            for j in range(4):
                p('v_lshlrev_b32 v%d, 16, v%d' % (X + 8 * rnd + 2 * j, 36 + 4 * rnd + j))
                p('v_and_b32 v%d, 0xffff0000, v%d' % (X + 8 * rnd + 2 * j + 1, 36 + 4 * rnd + j))
            for e in range(8):
                c = CB + 8 * rnd + e
                p('v_add_f32 v%d, 1.0, v%d' % (c, c))
            for j in range(4):
                c = CB + 8 * rnd + 2 * j
                p('v_cvt_pk_bf16_f32 v5, v%d, v%d' % (c, c + 1))
                p('v_lshlrev_b32 v%d, 16, v5' % c)
                p('v_and_b32 v%d, 0xffff0000, v5' % (c + 1))
            for e in range(8):
                c = CB + 8 * rnd + e
                p('v_mul_f32 v%d, v%d, v%d' % (c, c, X + 8 * rnd + e))
            for j in range(4):
                c = CB + 8 * rnd + 2 * j
                p('v_cvt_pk_bf16_f32 v%d, v%d, v%d' % (48 + 4 * rnd + j, c, c + 1))
            p('buffer_store_dwordx4 %s, v%d, %s, s%d offen offset:%d sc1' % (vr(48 + 4 * rnd, 4), 25 if rnd < 2 else 33, WSR, 43 if rnd < 2 else 38, 2048 * (rnd % 2)))
            p('buffer_store_dwordx4 %s, v%d, %s, s%d offen offset:%d sc1' % (vr(36 + 4 * rnd, 4), 25 if rnd < 2 else 33, WSR, 42 if rnd < 2 else 53, 2048 * (rnd % 2)))
    if not final:
        p('v_add_f32 v5, v%d, v%d' % (X + 16, X + 17))
        for e in range(2, 8):
            p('v_add_f32 v5, v5, v%d' % (X + 16 + e))
        p('v_cmp_gt_u32 vcc, 2, v28')
        p('v_cndmask_b32 v5, 0, v5, vcc')
        for e in range(16):
            p('v_add_f32 v5, v5, v%d' % (X + e))
        for mod in ('quad_perm:[1,0,3,2]', 'quad_perm:[2,3,0,1]'):
            p('v_add_f32_dpp v5, v5, v5 %s row_mask:0xf bank_mask:0xf' % mod)
        p('v_mul_f32 v5, %s, v5' % f32hex(1.0 / 80))
        p('v_sub_f32 v7, v%d, v5' % (X + 16))
        p('v_mul_f32 v6, v7, v7')
        for e in range(1, 8):
            p('v_sub_f32 v7, v%d, v5' % (X + 16 + e))
            p('v_fmac_f32 v6, v7, v7')
        p('v_cndmask_b32 v6, 0, v6, vcc')
        for e in range(16):
            p('v_sub_f32 v7, v%d, v5' % (X + e))
            p('v_fmac_f32 v6, v7, v7')
        for mod in ('quad_perm:[1,0,3,2]', 'quad_perm:[2,3,0,1]'):
            p('v_add_f32_dpp v6, v6, v6 %s row_mask:0xf bank_mask:0xf' % mod)
        p('''
        v_mov_b32 v4, v5
        v_mov_b32 v5, v6
        v_lshlrev_b32 v3, 6, v27
        s_lshl_b32 s7, s6, 3
        s_add_u32 s7, s7, 0x%x
        v_cmp_eq_u32 vcc, 0, v28
        v_mov_b32 v7, 0x%x
        v_cndmask_b32 v3, v7, v3, vcc
        buffer_store_dwordx2 v[4:5], v3, %s, s7 offen sc1
        ''' % (WS_ST, HUGE, WSR))
        signal(p, F_X, 37, 32, 8)
        p.reset()


def phase_ffn1(p, ST):
    MF = MF32
    ACC = lambda qt, m, f2: 80 + ((qt * 2 + m) * 2 + f2) * 16
    HF = lambda f: (f % 48) * 4
    AW = lambda ks, m, f2: 192 + ((ks % 4) * 4 + m * 2 + f2) * 4
    vDW, vTR, vH, vST, vU, vO, vRS, vUC, UCB = 16, 18, 24, 26, 27, 28, 30, 34, 36
    sW, sM0, sT, sF = sWV, 29, 30, 31
    SPLIT = 6
    p('''
    s_load_dwordx4 s[36:39], s[0:1], %d
    s_and_b32 s3, s2, 7
    s_lshr_b32 s4, s2, 3
    s_and_b32 s5, s3, 1
    s_lshl_b32 s5, s5, 2
    s_and_b32 s6, s4, 3
    s_add_u32 s5, s5, s6
    s_lshr_b32 s3, s3, 1
    s_mul_i32 s3, s3, 7
    s_lshr_b32 s4, s4, 2
    s_add_u32 s6, s3, s4
    s_waitcnt lgkmcnt(0)
    s_cmp_ge_u32 s4, 7
    s_cbranch_scc1 L_ffn1_end
    s_cmp_ge_u32 s6, 27
    s_cbranch_scc1 L_ffn1_end
    v_lshrrev_b32 v1, 6, v0
    v_and_b32 v2, 63, v0
    s_lshl_b32 s%d, s6, 7
    v_lshrrev_b32 v3, 4, v2
    v_and_b32 v4, 15, v2
    v_lshrrev_b32 v5, 5, v2
    v_bfe_u32 v6, v2, 2, 2
    v_and_b32 v7, 3, v2
    s_lshl_b32 s%d, s%d, 11
    v_and_b32 v8, 1, v3
    v_lshlrev_b32 v8, 2, v8
    v_and_b32 v9, 7, v2
    v_xor_b32 v8, v8, v9
    v_lshlrev_b32 v8, 4, v8
    v_lshrrev_b32 v9, 3, v2
    v_lshl_add_u32 v9, v1, 4, v9
    v_mul_u32_u24 v9, 3456, v9
    v_add_u32 v%d, v9, v8
    v_add_u32 v%d, %d, v%d
    ''' % (KA['wg'], sF, sM0, sW, vDW, vDW + 1, 8 * 3456 - 1024, vDW))
    srd(p, 8, 36, 640 * 3456)
    srd(p, 12, 38, 640 * 3456)

    def dma_w(c):
        L = [I('s_add_u32 s%d, s%d, %d' % (sT, sF, c * 64 * 3456))]
        for m in range(2):
            L.append(I('s_add_u32 m0, s%d, %d' % (sM0, c * 16384 + m * 8192)))
            for j in range(2):
                L.append(I('buffer_load_dwordx4 v%d, s[%d:%d], s%d offen offset:%d lds' % (vDW + j, 8 + 4 * m, 11 + 4 * m, sT, 1024 * j), tag='w%d' % c))
        return L

    def ld_h(c):
        L = [I('s_mov_b32 s34, 0x%x' % (WS_Z + c * 4096))]
        for ks in range(4):
            for qt in range(2):
                f = (c * 4 + ks) * 2 + qt
                L.append(I('buffer_load_dwordx4 %s, v%d, %s, s34 offen offset:%d sc1' % (ar(HF(f), 4), vH + qt, WSR, 1024 * ks)))
        return L

    if PUREH:
        p('s_lshl_b32 s37, s5, 7')
        p.add(ST.st())
        wait_word(p, WS_FLG + (F_X + 8) * 128, 's37', 1, 68)
        p.add(ST.st())
    for c in range(10):
        p.add(dma_w(c))
    p('''
    s_lshl_b32 s7, s5, 3
    s_lshl_b32 s3, s%d, 1
    s_add_u32 s7, s7, s3
    s_mul_i32 s3, s7, 40960
    v_lshlrev_b32 v10, 4, v2
    v_add_u32 v%d, s3, v10
    v_add_u32 v%d, 40960, v%d
    s_lshl_b32 s7, s7, 11
    s_add_u32 s7, s7, 0x%x
    v_and_b32 v10, 31, v2
    v_lshlrev_b32 v10, 6, v10
    v_add_u32 v%d, s7, v10
    v_lshl_add_u32 v8, v5, 3, v6
    v_lshlrev_b32 v8, 7, v8
    v_and_b32 v9, 1, v3
    v_lshl_add_u32 v8, v9, 5, v8
    v_and_b32 v9, 1, v7
    v_lshl_add_u32 v8, v9, 4, v8
    v_lshrrev_b32 v9, 1, v7
    v_lshl_add_u32 v8, v9, 3, v8
    v_lshrrev_b32 v10, 1, v6
    ''' % (sW, vH, vH + 1, vH, WS_ST, vST))
    for f2 in range(2):
        p('v_xor_b32 v9, %d, v10' % f2)
        p('v_lshl_add_u32 v%d, v9, 6, v8' % (vTR + f2))
        p('v_add_u32 v%d, 0x10000, v%d' % (vTR + 2 + f2, vTR + f2))
        p('v_add_u32 v%d, 0x20000, v%d' % (vTR + 4 + f2, vTR + f2))
    p('''
    v_lshrrev_b32 v8, 7, v0
    v_mul_u32_u24 v8, 3456, v8
    v_and_b32 v9, 1, v1
    v_mul_u32_u24 v9, 1728, v9
    v_add3_u32 v8, v8, v9, v2
    s_lshl_b32 s3, s6, 6
    v_add_u32 v8, s3, v8
    v_lshlrev_b32 v%d, 2, v8
    v_lshlrev_b32 v%d, 5, v5
    s_lshl_b32 s7, s5, 4
    s_lshl_b32 s3, s%d, 2
    s_add_u32 s7, s7, s3
    s_mul_i32 s7, s7, 54
    s_lshl_b32 s3, s6, 1
    s_add_u32 s7, s7, s3
    s_lshl_b32 s7, s7, 10
    s_add_u32 s7, s7, 0x%x
    v_and_b32 v8, 1, v3
    v_mul_u32_u24 v8, %d, v8
    v_lshl_add_u32 v8, v5, 8, v8
    v_lshl_add_u32 v8, v4, 4, v8
    v_add_u32 v%d, s7, v8
    v_add_u32 v%d, %d, v%d
    s_lshl_b32 s37, s5, 7
    ''' % (vU, vUC, sW, WS_ACT, 54 * 1024, vO, vO + 1, 2 * 54 * 1024, vO))
    wait_word(p, WS_FLG + F_U * 128, '0', 256, 68)
    for ks in range(16):
        p('s_mov_b32 s33, 0x%x' % (WS_UP + ks * 2 * 3456 * 4))
        p('buffer_load_dword v%d, v%d, %s, s33 offen sc1' % (208 + ks, vU, WSR))
    for ks in range(1, 16):
        p('v_add_f32 v208, v208, v%d' % (208 + ks))
    p('v_mov_b32 v35, v208')
    small = []
    for qt in range(2):
        for j in range(4):
            small.append(I('buffer_load_dwordx4 %s, v%d, %s, 0 offen offset:%d sc1' % (vr(36 + 16 * qt + 4 * j, 4), vST, WSR, 2048 * qt + 16 * j)))
    pp = Prog()
    for qt in range(2):
        b = 36 + 16 * qt
        pp('v_add_f32 v8, v%d, v%d' % (b, b + 2))
        for j in range(2, 8):
            pp('v_add_f32 v8, v8, v%d' % (b + 2 * j))
        pp('v_mul_f32 v8, %s, v8' % f32hex(0.125))
        pp('v_add_f32 v9, v%d, v%d' % (b + 1, b + 3))
        for j in range(2, 8):
            pp('v_add_f32 v9, v9, v%d' % (b + 1 + 2 * j))
        pp('v_sub_f32 v10, v%d, v8' % b)
        pp('v_mul_f32 v12, v10, v10')
        for j in range(1, 8):
            pp('v_sub_f32 v10, v%d, v8' % (b + 2 * j))
            pp('v_fmac_f32 v12, v10, v10')
        pp('v_mov_b32 v10, %s' % f32hex(80.0))
        pp('v_fmac_f32 v9, v12, v10')
        pp('v_mov_b32 v10, %s' % f32hex(1e-5))
        pp('v_fmac_f32 v10, %s, v9' % f32hex(1.0 / 640))
        pp('v_rsq_f32 v%d, v10' % (vRS + qt))
        pp('v_mul_f32 v%d, v8, v%d' % (vRS + 2 + qt, vRS + qt))
        pp('v_sub_f32 v%d, 0, v%d' % (vRS + 2 + qt, vRS + 2 + qt))
    stat_items = pp.items

    def rd_w(kk):
        c, ks = kk // 4, kk % 4
        L = []
        for m in range(2):
            for f2 in range(2):
                for a in range(2):
                    L.append(I('ds_read_b64_tr_b16 %s, v%d offset:%d' % (ar(AW(kk, m, f2) + 2 * a, 2), vTR + 2 * (c // 4) + f2,
                                                                         (c % 4) * 16384 + m * 8192 + (16 * ks + 4 * a) * 128)))
        return L

    def mf(kk, qts):
        L = []
        for m in range(2):
            for f2 in range(2):
                for qt in qts:
                    src = vr(ACC(qt, m, f2), 16) if kk > 0 else '0'
                    L.append(I('%s %s, %s, %s, %s' % (MF, vr(ACC(qt, m, f2), 16), ar(AW(kk, m, f2), 4), ar(HF(kk * 2 + qt), 4), src)))
        return L

    def epi(qt):
        L = []
        n = 0
        for f2 in range(2):
            for t2 in range(2):
                for wh in range(2):
                    for m in range(2):
                        for hh in range(2):
                            L.append(I('ds_read_b128 %s, v%d offset:%d' % (vr(UCB + (wh * 2 + m) * 8 + 4 * hh, 4), vUC,
                                                                          (wh * 128 + m * 64 + 32 * f2 + 16 * t2) * 4 + 16 * hh)))
                g, u = ACC(qt, 0, f2) + 8 * t2, ACC(qt, 1, f2) + 8 * t2
                tt = 208 + 12 * (n % 2)
                n += 1
                for m, r in ((0, g), (1, u)):
                    for e in range(8):
                        L.append(I('v_fma_f32 v%d, v%d, v%d, v%d' % (UCB + m * 8 + e, UCB + m * 8 + e, vRS + 2 + qt, UCB + 16 + m * 8 + e)))
                    for e in range(8):
                        L.append(I('v_fma_f32 v%d, v%d, v%d, v%d' % (r + e, r + e, vRS + qt, UCB + m * 8 + e)))
                for e in range(8):
                    L.append(I('v_mul_f32 v%d, %s, v%d' % (tt + e, f32hex(-LOG2E), g + e)))
                for e in range(8):
                    L.append(I('v_exp_f32 v%d, v%d' % (tt + e, tt + e)))
                for e in range(8):
                    L.append(I('v_mul_f32 v%d, v%d, v%d' % (g + e, g + e, u + e)))
                for e in range(8):
                    L.append(I('v_add_f32 v%d, 1.0, v%d' % (tt + e, tt + e)))
                for e in range(8):
                    L.append(I('v_rcp_f32 v%d, v%d' % (tt + e, tt + e)))
                for e in range(8):
                    L.append(I('v_mul_f32 v%d, v%d, v%d' % (g + e, g + e, tt + e)))
                for j in range(4):
                    L.append(I('v_cvt_pk_bf16_f32 v%d, v%d, v%d' % (tt + 8 + j, g + 2 * j, g + 2 * j + 1)))
                L.append(I('buffer_store_dwordx4 %s, v%d, %s, 0 offen offset:%d sc1' % (vr(tt + 8, 4), vO + qt, WSR, f2 * 1024 + t2 * 512)))
        return L

    if not PUREH:
        p.add(ST.st())
    wait_word(p, WS_FLG + (F_X + 8) * 128, 's37', 1, 68)
    if not PUREH:
        p.add(ST.st())
    NPRE = 3
    for c in range(NPRE):
        p.add(ld_h(c))
    p('s_barrier')
    p.add(rd_w(0))
    p.add(rd_w(1))
    sc = Sched()
    sc.queue(small, 0)
    for c in range(NPRE, 10):
        sc.queue(ld_h(c), max(0, 32 * (c - 5)))
    seq = [(kk, (0, 1)) for kk in range(4 * SPLIT)] + [(kk, (0,)) for kk in range(4 * SPLIT, 40)] + [(kk, (1,)) for kk in range(4 * SPLIT, 40)]
    starts = []
    for kk, qts in seq:
        starts.append(sc.mf(mf(kk, qts)))
    starts.append(len(sc.m))
    for i, (kk, qts) in enumerate(seq):
        if i + 2 < len(seq):
            sc.place(rd_w(seq[i + 2][0]), starts[i], starts[i + 1])
    sc.place([I('s_barrier')], starts[8], starts[8] + 1)
    sc.place([I('v_lshlrev_b32 v8, 2, v0'), I('ds_write_b32 v8, v35')], starts[9], starts[9] + 1)
    sc.place(stat_items, starts[10], starts[18])
    sc.place([I('s_barrier')], starts[20], starts[20] + 1)
    q1 = 4 * SPLIT + (40 - 4 * SPLIT)
    sc.place(epi(0), starts[q1] + 1, starts[len(seq)])
    sc.emit(p)
    p.add(ST.st())
    p.add(epi(1))
    signal(p, F_A, 37, 27, 8)
    p('L_ffn1_end:')
    p.reset()


def gen_mega():
    p = Prog()
    p('''
    s_cmp_ge_u32 s2, 256
    s_cbranch_scc1 L_mega_end
    ''')
    ST = Stamps(1)
    ST.begin(p)
    tail = phase_attn(p, ST)
    if NPH >= 3:
        phase_gemm(p, ST, False)
    if NPH >= 4:
        phase_ffn1(p, ST)
    if NPH >= 5:
        phase_gemm(p, ST, True)
    ST.end(p)
    p('L_mega_end:')
    p('s_endpgm')
    tail(p)
    p('L_code_end:')
    return kernel_text(KNAME, finalize(p, True), 256, 256, 102)


KNAME = 'adaLN_cond__sliding_block_cached__swiglu_ffn__prompt_kernel'


def main():
    code, kd = gen_mega()
    out = []
    out.append('; @launch grid=(256,1,1) block=(256,1,1) lds=163840')
    out.append('.amdgcn_target "amdgcn-amd-amdhsa--gfx950"')
    out.append('.text')
    out.append(code)
    out.append('.section .rodata,"a"')
    out.append('.p2align 6')
    out.append(kd)
    path = sys.argv[1] if len(sys.argv) > 1 else 'adaLN_cond__sliding_block_cached__swiglu_ffn__prompt.s'
    open(path, 'w').write('\n'.join(out))
    print('wrote', path, sum(len(x) for x in out), 'bytes')


if __name__ == '__main__':
    main()
```
